```python
import torch

def _softmax(x, axis=-1):
    return torch.softmax(x, dim=axis)
def _gelu(x):
    return torch.nn.functional.gelu(x, approximate="tanh")
def _silu(x):
    return torch.nn.functional.silu(x)
def _sigmoid(x):
    return torch.sigmoid(x)
def _layernorm(x, axis=-1, eps=1e-5):
    m = x.mean(dim=axis, keepdim=True)
    v = x.var(dim=axis, keepdim=True, unbiased=False)
    return (x - m) / torch.sqrt(v + eps)
def _scatter_add(tgt, idx, src, axis=0):
    return tgt.clone().index_add_(axis, idx, src)
def _segment_sum(src, seg, n):
    out = torch.zeros((n,) + src.shape[1:], dtype=src.dtype)
    return out.index_add_(0, seg, src)
def _pad(x, pw):
    flat = tuple(v for pair in reversed(pw) for v in pair)
    return torch.nn.functional.pad(x, flat)

kernel_name = 'recurrent_scan__sliding_block_cached__glu_gated_glu__decode'

def setup_inputs():

    _w = (lambda a: (lambda t: t.to(torch.bfloat16) if t.is_floating_point() else t)(torch.as_tensor(a)))
    def _A_setup():
        B, Sq, D = 8, 1, 512
        Hq, Hkv, Sk, Dh = 32, 8, 8192, 128
        assert Hq % Hkv == 0, (Hq, Hkv)
        return {
            "x": _w((lambda *s: torch.randn(*s, dtype=torch.bfloat16) * 0.05)(B, Sq, D)),
            "k_cache": _w((lambda *s: torch.randn(*s, dtype=torch.bfloat16) * 1.6)(B, Hkv, Sk, Dh)),
            "v_cache": _w((lambda *s: torch.randn(*s, dtype=torch.bfloat16) * 0.2)(B, Hkv, Sk, Dh)),
            "wq": _w((lambda *s: torch.randn(*s, dtype=torch.bfloat16) * 1.6)(D, Hq * Dh) * (D ** -0.5)),
            "wo": _w((lambda *s: torch.randn(*s, dtype=torch.bfloat16) * 0.2)(Hq * Dh, D) * ((Hq * Dh) ** -0.5)),
        }
    _A_in = _A_setup()

    def _B_setup():
        B, S, D, F = 8, 1, 512, 1792
        return {
            "x": _w((lambda *s: torch.randn(*s, dtype=torch.bfloat16) * 0.05)(B, S, D)),
            "w_gate": _w((lambda *s: torch.randn(*s, dtype=torch.bfloat16) * 0.2)(D, F)),
            "w_up": _w((lambda *s: torch.randn(*s, dtype=torch.bfloat16) * 0.1)(D, F)),
            "w_down": _w((lambda *s: torch.randn(*s, dtype=torch.bfloat16) * 0.1)(F, D)),
        }
    _B_in = _B_setup()

    return {
        "A_x": _A_in["x"],
        "A_k_cache": _A_in["k_cache"],
        "A_v_cache": _A_in["v_cache"],
        "A_wq": _A_in["wq"],
        "A_wo": _A_in["wo"],
        "B_x": _B_in["x"],
        "B_w_gate": _B_in["w_gate"],
        "B_w_up": _B_in["w_up"],
        "B_w_down": _B_in["w_down"],
    }

def reference(A_x, A_k_cache, A_v_cache, A_wq, A_wo, B_x, B_w_gate, B_w_up, B_w_down):
    def _A_ref(x, k_cache, v_cache, wq, wo):
        B, Sq, D = x.shape
        Hq, Dh = 32, 128
        Hkv, Sk = k_cache.shape[1], k_cache.shape[2]
        W = min(4096, max(256, Sk // 4))
        rep = Hq // Hkv
        q = (lambda x, *d: x.permute(*d))((x @ wq).reshape(B, Sq, Hq, Dh), 0, 2, 1, 3)
        k = (lambda x, n, axis: torch.repeat_interleave(x, n, dim=axis))(k_cache[:, :, Sk - W:, :], rep, axis=1)
        v = (lambda x, n, axis: torch.repeat_interleave(x, n, dim=axis))(v_cache[:, :, Sk - W:, :], rep, axis=1)
        scores = torch.einsum("bhqd,bhkd->bhqk", q, k) * (Dh ** -0.5)
        p = _softmax(scores, axis=-1)
        o = torch.einsum("bhqk,bhkd->bhqd", p, v)
        return (lambda x, *d: x.permute(*d))(o, 0, 2, 1, 3).reshape(B, Sq, Hq * Dh) @ wo

    def _B_ref(x, w_gate, w_up, w_down):
        g = torch.einsum("bsd,df->bsf", x, w_gate)
        u = torch.einsum("bsd,df->bsf", x, w_up)
        h = _sigmoid(g) * u
        return torch.einsum("bsf,fd->bsd", h, w_down)

    x = A_x
    xn = _layernorm(x, axis=-1)
    s = _A_ref(xn, A_k_cache, A_v_cache, A_wq, A_wo)
    g = _silu(_B_ref(xn, B_w_gate, B_w_up, B_w_down))
    return x + s * g
```

```python
import re

TRANS = ("v_exp_f32", "v_log_f32", "v_rcp_f32", "v_rsq_f32", "v_sqrt_f32", "v_sin_f32", "v_cos_f32")

def _regs(tok):
    tok = tok.strip()
    tok = tok.lstrip("-")
    m = re.fullmatch(r"abs\((.*)\)", tok)
    if m: tok = m.group(1)
    m = re.fullmatch(r"\|(.*)\|", tok)
    if m: tok = m.group(1)
    m = re.fullmatch(r"([vs])(\d+)", tok)
    if m: return {tok}
    m = re.fullmatch(r"([vs])\[(\d+):(\d+)\]", tok)
    if m: return {f"{m.group(1)}{i}" for i in range(int(m.group(2)), int(m.group(3)) + 1)}
    if tok in ("vcc", "vcc_lo", "vcc_hi"): return {"vcc"}
    if tok in ("exec", "exec_lo", "exec_hi"): return {"exec"}
    if tok == "m0": return {"m0"}
    return set()

class Ins:
    def __init__(self, text):
        self.text = text
        t = text.split(";")[0].strip()
        parts = t.split(None, 1)
        self.op = parts[0]
        rest = parts[1] if len(parts) > 1 else ""
        ops, depth, cur = [], 0, ""
        for ch in rest:
            if ch in "[(": depth += 1
            if ch in "])": depth -= 1
            if ch == "," and depth == 0:
                ops.append(cur.strip()); cur = ""
            else:
                cur += ch
        if cur.strip(): ops.append(cur.strip())
        mods = ""
        if ops:
            sp = ops[-1].split(None, 1)
            ops[-1] = sp[0]
            mods = sp[1] if len(sp) > 1 else ""
        self.ops, self.mods = ops, mods
        op = self.op
        self.is_mfma = op.startswith("v_mfma")
        self.is_valu = op.startswith("v_") and not self.is_mfma
        self.is_trans = any(op.startswith(x) for x in TRANS)
        self.is_dpp = "_dpp" in op or any(k in mods for k in ("row_", "quad_perm", "wave_"))
        self.is_perml = op.startswith("v_permlane")
        self.is_vmem = op.startswith(("buffer_", "global_", "flat_"))
        self.is_ds = op.startswith("ds_")
        self.is_branch = op.startswith(("s_cbranch", "s_branch", "s_setpc", "s_swappc")) or op == "s_endpgm"
        self.is_lds_dma = self.is_vmem and re.search(r"\blds\b", mods) is not None
        self.nop = int(ops[0], 0) + 1 if op == "s_nop" else 1
        R = [_regs(o) for o in ops]
        self.w, self.r = set(), set()
        self.mfma_c = set(); self.mfma_ab = set(); self.store_data = set()
        if self.is_mfma:
            self.w = R[0]; self.mfma_ab = R[1] | R[2]; self.mfma_c = R[3]; self.r = self.mfma_ab | self.mfma_c
        elif self.is_valu:
            if op.startswith(("v_swap", "v_permlane16_swap", "v_permlane32_swap")):
                self.w = R[0] | R[1]; self.r = R[0] | R[1]
            elif op.startswith("v_cmp"):
                self.w = R[0]; self.r = set().union(*R[1:])
            elif op.startswith(("v_add_co", "v_sub_co", "v_addc_co", "v_subb_co")):
                self.w = R[0] | R[1]; self.r = set().union(*R[2:])
            else:
                self.w = R[0]; self.r = set().union(*R[1:]) if len(R) > 1 else set()
                if op.startswith(("v_fmac", "v_pk_fmac")) or (self.is_dpp and op.startswith("v_mov")):
                    self.r |= R[0]
                if op.startswith("v_cndmask") and len(ops) == 3: self.r |= {"vcc"}
        elif self.is_ds:
            if op.startswith(("ds_read", "ds_bpermute", "ds_permute", "ds_swizzle")) or "_rtn" in op:
                self.w = R[0]; self.r = set().union(*R[1:])
            else:
                self.r = set().union(*R)
        elif self.is_vmem:
            if "load" in op and not self.is_lds_dma:
                self.w = R[0]; self.r = set().union(*R[1:])
            else:
                self.r = set().union(*R)
                if "store" in op and ("x4" in op or "x3" in op):
                    self.store_data = R[0] if op.startswith("buffer") else R[1]
            if self.is_lds_dma: self.r |= {"m0"}
        elif op.startswith("s_"):
            if op.startswith(("s_cmp", "s_cbranch", "s_branch", "s_waitcnt", "s_nop", "s_barrier", "s_sleep", "s_endpgm", "s_setprio", "s_bitcmp")):
                self.r = set().union(*R) if R else set()
            else:
                self.w = R[0] if R else set(); self.r = set().union(*R[1:]) if len(R) > 1 else set()
                if "saveexec" in op: self.w |= {"exec"}

def need(prev, cur):
    n = 0
    pv = {x for x in prev.w if x[0] == "v" and x != "vcc"}
    ps = {x for x in prev.w if x[0] == "s" or x == "vcc"}
    if cur.is_branch and cur.op != "s_endpgm":
        if prev.is_mfma: return 8
        if prev.is_valu:
            if ps - {"vcc"}: return 5
            return 2
        if prev.store_data: return 2
        if "m0" in prev.w: return 1
        return 0
    if prev.is_mfma:
        if cur.is_mfma:
            if cur.mfma_ab & pv: n = max(n, 8)
            if cur.mfma_c & pv and cur.mfma_c != pv: n = max(n, 6)
            if cur.w & pv and cur.mfma_c != pv: n = max(n, 8)
        else:
            if (cur.r | cur.w) & pv: n = max(n, 8)
            if cur.is_valu and cur.w & prev.mfma_c: n = max(n, 3)
    if prev.is_valu:
        if cur.is_mfma and cur.r & pv: n = max(n, 2)
        if cur.is_valu and cur.is_dpp and cur.r & pv: n = max(n, 2)
        if cur.is_perml and cur.r & pv: n = max(n, 2)
        if prev.is_trans and cur.is_valu and not cur.is_trans and cur.r & pv: n = max(n, 1)
        if prev.is_trans and (cur.is_mfma or cur.is_ds or cur.is_vmem) and cur.r & pv: n = max(n, 1)
        if cur.op.startswith(("v_readfirstlane", "v_readlane")) and cur.r & pv: n = max(n, 1)
        if ps:
            if cur.is_valu and cur.r & ps: n = max(n, 2)
            if cur.is_vmem and cur.r & ps: n = max(n, 5)
            if cur.op.startswith(("v_readlane", "v_writelane")) and cur.r & ps: n = max(n, 4)
        if "exec" in prev.w:
            if cur.is_dpp: n = max(n, 5)
            if cur.is_mfma or cur.is_perml or cur.op.startswith(("v_readfirstlane", "v_readlane")): n = max(n, 4)
    if prev.store_data and cur.w & prev.store_data: n = max(n, 2)
    if "m0" in prev.w and cur.is_lds_dma: n = max(n, 1)
    return n

class Emitter:
    def __init__(self):
        self.lines = []
        self.hist = []
        self.nlabel = 0
    def raw(self, s): self.lines.append(s)
    def label(self, name): self.lines.append(f"{name}:")
    def newlabel(self, p="L"):
        self.nlabel += 1
        return f"{p}_{self.nlabel}"
    def __call__(self, text):
        for t in text.strip().split("\n"):
            t = t.strip()
            if not t or t.startswith(";"): continue
            if t.endswith(":"):
                self.label(t[:-1]); continue
            ins = Ins(t)
            dist = 0; pad = 0
            for p in reversed(self.hist[-16:]):
                if p is None: break
                k = need(p, ins) - dist
                if k > pad: pad = k
                dist += p.nop
                if dist >= 12: break
            while pad > 0:
                k = min(pad, 16)
                self.lines.append(f"  s_nop {k-1}")
                self.hist.append(Ins(f"s_nop {k-1}"))
                pad -= k
            self.lines.append("  " + t)
            self.hist.append(ins)
            if ins.op in ("s_branch", "s_endpgm", "s_setpc_b64"): self.hist.append(None)
    def text(self): return "\n".join(self.lines) + "\n"
```

```python
import sys
from emit import Emitter
KNAME = "recurrent_scan__sliding_block_cached__glu_gated_glu__decode_kernel"

WS_EPOCH = 0
WSQ = 0x10000
WSG = 0x40000
WSU = 0x50000
WML = 0x60000
WOP = 0x80000
WSB = 0x200000
WSTAMP = 0x600000
WS_SIZE = 0x800000
L_CNT = 0
L_MACC = 16
L_LACC = 32
L_QS = 256
L_XN = L_QS + 8192
L_OB = L_XN + 8320
L_HB = L_OB + 1152
L_PO = L_HB + 1152
L_WO = ((L_PO + 8 * 2304 + 1023) // 1024) * 1024
L_WD = L_WO + 16384
L_U = L_WD + 8192
LDS_TOTAL = L_U + 65536

KS = lambda j: 64 + 16 * j
VS = lambda j: 144 + 16 * j
SC = lambda j: 224 + 4 * j
def vr(a, n): return f"v[{a}:{a+n-1}]"

def gen(stamps=False, spin_limit=2000000):
    e = Emitter()
    for ln in open("recurrent_scan__sliding_block_cached__glu_gated_glu__decode.s.ref"):
        if ln.startswith("; @launch") or not ln.startswith(";"): break
        e.raw(ln.rstrip("\n"))
    e.raw(f"; @launch grid=(256,1,1) block=(512,1,1) lds={LDS_TOTAL}")
    e.raw('.amdgcn_target "amdgcn-amd-amdhsa--gfx950"')
    e.raw(".text"); e.raw(f".globl {KNAME}"); e.raw(".p2align 8"); e.raw(f".type {KNAME},@function")
    e.label(KNAME)
    nst = [0]
    def stamp(k):
        if stamps:
            e(f"s_memrealtime s[84:85]")
            e("s_waitcnt lgkmcnt(0)")
            e(f"v_writelane_b32 v255, s84, {k}")
    def spin_check(lbl_retry, sleep=1):
        e(f"""s_sub_u32 s82, s82, 1
              s_cbranch_scc1 L_bail
              s_sleep {sleep}
              s_branch {lbl_retry}""")
    def lds_spin(cnt_off, target, extra_reads=""):
        L = e.newlabel("L_spin"); D = e.newlabel("L_spun")
        e.label(L)
        e(f"ds_read_b32 v6, v7 offset:{cnt_off}")
        if extra_reads: e(extra_reads)
        e(f"""s_waitcnt lgkmcnt(0)
              v_readfirstlane_b32 s3, v6
              s_cmp_eq_u32 s3, {target}
              s_cbranch_scc1 {D}""")
        spin_check(L, 1)
        e.label(D)
    def tagacc(first, regs, acc="v6"):
        for k, r in enumerate(regs):
            if first and k == 0:
                e(f"v_xor_b32 {acc}, s11, v{r}")
            else:
                e(f"v_bitop3_b32 {acc}, {acc}, v{r}, s11 bitop3:0xf6")

    e(f"""s_cmp_ge_u32 s2, 256
          s_cbranch_scc1 L_end""")
    if stamps: e("v_mov_b32 v255, 0")
    stamp(0)
    e(f"""s_load_dwordx2 s[40:41], s[0:1], 8
          s_load_dwordx2 s[44:45], s[0:1], 16
          s_load_dwordx2 s[64:65], s[0:1], 0
          s_load_dwordx2 s[48:49], s[0:1], 88
          v_lshrrev_b32 v2, 6, v0
          v_and_b32 v1, 63, v0
          s_and_b32 s4, s2, 7
          v_readfirstlane_b32 s8, v2
          s_lshr_b32 s5, s2, 3
          s_lshr_b32 s6, s5, 2
          s_and_b32 s7, s5, 3
          s_lshl_b32 s16, s6, 3
          s_add_u32 s16, s16, s4
          s_lshl_b32 s13, s16, 1
          s_add_u32 s13, s13, s7
          s_cmp_ge_u32 s13, 64
          s_cselect_b32 s12, 2, 1
          s_cselect_b32 s15, 48, 24
          s_mov_b32 s14, 8192
          s_mov_b32 s54, 4194304
          s_cselect_b32 s14, 3584, s14
          s_cselect_b32 s54, 1835008, s54
          s_cselect_b32 s17, 64, 0
          s_cmp_ge_u32 s13, 92
          s_cselect_b32 s12, 3, s12
          s_cselect_b32 s15, 56, s15
          s_cselect_b32 s17, 92, s17
          s_load_dwordx2 s[52:53], s[0:1], s15
          s_load_dwordx2 s[56:57], s[0:1], 32
          s_load_dwordx2 s[60:61], s[0:1], 64
          s_load_dwordx2 s[68:69], s[0:1], 72
          s_cmp_ge_u32 s13, 120
          s_cselect_b32 s12, 0, s12
          s_sub_u32 s13, s13, s17
          s_cmp_ge_u32 s7, 2
          s_cselect_b32 s12, 0, s12
          s_cselect_b32 s10, 0, 2
          s_cselect_b32 s18, 4, 2
          s_and_b32 s9, s8, 3
          s_mov_b32 s42, 0x8000000
          s_mov_b32 s43, 0x20000
          s_mov_b32 s46, 0x8000000
          s_mov_b32 s47, 0x20000
          s_mov_b32 s50, {WS_SIZE}
          s_mov_b32 s51, 0x20000
          s_mov_b32 s55, 0x20000
          s_mov_b32 s58, 4194304
          s_mov_b32 s59, 0x20000
          s_mov_b32 s62, 1835008
          s_mov_b32 s63, 0x20000
          s_mov_b32 s66, 8192
          s_mov_b32 s67, 0x20000
          s_mov_b32 s70, 8192
          s_mov_b32 s71, 0x20000
          s_mov_b32 s82, {spin_limit}
          s_sub_u32 s19, 0, s10
          s_cmp_ge_u32 s8, 4
          s_cselect_b32 s19, s18, s19
          s_cselect_b32 s10, 1, s10
          s_cselect_b32 s12, 0, s12
          s_mul_i32 s20, s7, 28
          s_cmp_eq_u32 s7, 3
          s_cselect_b32 s21, 8, 0
          s_add_u32 s20, s20, s21
          s_lshl_b32 s19, s19, 2
          s_add_u32 s20, s20, s19
          s_add_u32 s20, s20, s9
          s_lshl_b32 s20, s20, 12
          s_lshl_b32 s21, s16, 21
          s_add_u32 s20, s20, s21
          s_add_u32 s20, s20, {6144*256}
          s_add_u32 s21, s20, 16384
          s_add_u32 s22, s20, 32768
          s_add_u32 s23, s20, 49152
          s_add_u32 s24, s20, 65536
          v_and_b32 v2, 15, v1
          v_lshrrev_b32 v3, 4, v1
          v_mov_b32 v7, 0
          ; K voffset: (l&7)*256 + ((l>>3)&1)*64 + g*16
          v_and_b32 v4, 7, v1
          v_lshlrev_b32 v4, 8, v4
          v_bfe_u32 v6, v1, 3, 1
          v_lshl_add_u32 v4, v6, 6, v4
          v_lshl_add_u32 v4, v3, 4, v4
          ; V voffset: g*1024 + n*16
          v_lshlrev_b32 v5, 10, v3
          v_lshl_add_u32 v5, v2, 4, v5
          s_cmp_lg_u32 s8, 0
          s_cbranch_scc1 L_noinit
          v_mov_b32 v8, 0
          v_mov_b32 v9, 0
          v_mov_b32 v10, 0
          v_mov_b32 v11, 0
          v_mov_b32 v12, 0xff800000
          v_mov_b32 v13, 0xff800000
          v_mov_b32 v14, 0xff800000
          v_mov_b32 v15, 0xff800000
          ds_write_b128 v7, v[8:11] offset:{L_CNT}
          ds_write_b128 v7, v[12:15] offset:{L_MACC}
          ds_write_b128 v7, v[8:11] offset:{L_LACC}
          L_noinit:
          s_waitcnt lgkmcnt(0)
          s_barrier
          s_load_dword s72, s[48:49], {WS_EPOCH}
          s_cmp_eq_u32 s12, 0
          s_cbranch_scc1 L_att""")

    e(f"""s_lshl_b32 s16, s9, 11
          v_lshlrev_b32 v8, 5, v1
          buffer_load_dwordx4 v[64:67], v8, s[64:67], s16 offen
          buffer_load_dwordx4 v[68:71], v8, s[64:67], s16 offen offset:16
          v_lshrrev_b32 v9, 3, v1
          v_mul_lo_u32 v9, v9, s14
          v_lshlrev_b32 v10, 1, v3
          v_and_b32 v11, 7, v1
          v_xor_b32 v10, v10, v11
          v_lshl_add_u32 v9, v10, 4, v9
          s_lshl_b32 s17, s14, 7
          s_mul_i32 s17, s17, s9
          s_lshl_b32 s18, s13, 7
          s_add_u32 s17, s17, s18
          s_lshl_b32 s18, s14, 3
          s_lshl_b32 s19, s9, 14
          s_add_u32 s19, s19, {L_U}
          s_add_u32 s25, s19, 16384
          L_udma:
          s_mov_b32 m0, s19
          s_add_u32 s19, s19, 1024
          buffer_load_dwordx4 v9, s[52:55], s17 offen nt lds
          s_add_u32 s17, s17, s18
          s_cmp_lt_u32 s19, s25
          s_cbranch_scc1 L_udma
          s_waitcnt vmcnt(16)""")
    stamp(1)
    for k in range(8):
        e(f"v_lshlrev_b32 v{80+2*k}, 16, v{64+k}")
        e(f"v_and_b32 v{81+2*k}, 0xffff0000, v{64+k}")
    def reduce32(t, tmp):
        e(f"""v_add_f32_dpp {t}, {t}, {t} quad_perm:[1,0,3,2] row_mask:0xf bank_mask:0xf
              v_add_f32_dpp {t}, {t}, {t} quad_perm:[2,3,0,1] row_mask:0xf bank_mask:0xf
              v_add_f32_dpp {t}, {t}, {t} row_half_mirror row_mask:0xf bank_mask:0xf
              v_add_f32_dpp {t}, {t}, {t} row_mirror row_mask:0xf bank_mask:0xf
              v_mov_b32 {tmp}, {t}
              v_permlane16_swap_b32 {t}, {tmp}
              v_add_f32 {t}, {t}, {tmp}""")
    for k in range(4):
        e(f"v_pk_add_f32 v[{96+2*k}:{97+2*k}], v[{80+4*k}:{81+4*k}], v[{82+4*k}:{83+4*k}]")
    e("""v_pk_add_f32 v[96:97], v[96:97], v[98:99]
         v_pk_add_f32 v[100:101], v[100:101], v[102:103]
         v_pk_add_f32 v[96:97], v[96:97], v[100:101]
         v_add_f32 v10, v96, v97""")
    reduce32("v10", "v11")
    e("v_mul_f32 v10, 0x3b000000, v10")
    e("v_mov_b32 v12, 0")
    e("v_mov_b32 v13, 0")
    for k in range(16):
        e(f"v_sub_f32 v{96+k}, v{80+k}, v10")
    for k in range(16):
        e(f"v_fmac_f32 v{12+(k&1)}, v{96+k}, v{96+k}")
    e("v_add_f32 v12, v12, v13")
    reduce32("v12", "v11")
    e("""v_mul_f32 v12, 0x3b000000, v12
         v_cvt_pk_bf16_f32 v10, v10, v12
         v_and_b32 v12, 0xffff0000, v10
         v_lshlrev_b32 v10, 16, v10
         v_add_f32 v12, 0x3727c5ac, v12
         v_cvt_pk_bf16_f32 v12, v12, v12
         v_and_b32 v12, 0xffff0000, v12
         v_sqrt_f32 v12, v12
         v_cvt_pk_bf16_f32 v12, v12, v12
         v_and_b32 v12, 0xffff0000, v12
         v_rcp_f32 v13, v12""")
    for k in range(16):
        e(f"v_sub_f32 v{80+k}, v{80+k}, v10")
    for k in range(8):
        e(f"v_cvt_pk_bf16_f32 v{96+k}, v{80+2*k}, v{81+2*k}")
    for k in range(8):
        e(f"v_lshlrev_b32 v{80+2*k}, 16, v{96+k}")
        e(f"v_and_b32 v{81+2*k}, 0xffff0000, v{96+k}")
    for k in range(16):
        e(f"v_mul_f32 v{96+k}, v{80+k}, v13")
    for k in range(16):
        e(f"v_fma_f32 v{80+k}, -v{96+k}, v12, v{80+k}")
    for k in range(16):
        e(f"v_fmac_f32 v{96+k}, v{80+k}, v13")
    for k in range(8):
        e(f"v_cvt_pk_bf16_f32 v{64+k}, v{96+2*k}, v{97+2*k}")
    e(f"""v_lshrrev_b32 v10, 5, v1
          s_lshl_b32 s16, s9, 1
          v_add_u32 v10, s16, v10
          v_mul_u32_u24 v10, 1040, v10
          v_bfe_u32 v11, v1, 1, 4
          v_lshl_add_u32 v10, v11, 6, v10
          v_and_b32 v11, 1, v1
          v_lshl_add_u32 v10, v11, 3, v10
          ds_write_b64 v10, v[64:65] offset:{L_XN}
          ds_write_b64 v10, v[66:67] offset:{L_XN+16}
          ds_write_b64 v10, v[68:69] offset:{L_XN+32}
          ds_write_b64 v10, v[70:71] offset:{L_XN+48}
          v_lshrrev_b32 v11, 2, v2
          v_lshl_add_u32 v11, v3, 2, v11
          v_lshlrev_b32 v12, 7, v11
          v_bfe_u32 v11, v11, 1, 2
          v_xor_b32 v11, s9, v11
          v_lshl_add_u32 v12, v11, 5, v12
          v_and_b32 v11, 3, v2
          v_lshl_add_u32 v12, v11, 3, v12
          v_add_u32 v12, {L_U}, v12
          v_and_b32 v13, 7, v2
          v_mul_u32_u24 v13, 1040, v13
          v_lshl_add_u32 v13, v3, 4, v13
          v_mov_b32 v11, 1
          s_waitcnt vmcnt(0) lgkmcnt(0)
          s_mov_b64 exec, 1
          ds_add_u32 v7, v11 offset:{L_CNT}
          s_mov_b64 exec, -1""")
    stamp(2)
    lds_spin(L_CNT + 0, 4)
    for half in range(2):
        for s in range(8 * half, 8 * half + 8):
            r = 64 + 8 * (s & 7)
            e(f"ds_read_b64_tr_b16 v[{r}:{r+1}], v12 offset:{s*4096}")
            e(f"ds_read_b64_tr_b16 v[{r+2}:{r+3}], v12 offset:{s*4096+2048}")
            e(f"ds_read_b128 v[{r+4}:{r+7}], v13 offset:{L_XN + s*64}")
        e("s_waitcnt lgkmcnt(0)")
        for s in range(8 * half, 8 * half + 8):
            r = 64 + 8 * (s & 7)
            c = "0" if s == 0 else "v[32:35]"
            e(f"v_mfma_f32_16x16x32_bf16 v[32:35], v[{r}:{r+3}], v[{r+4}:{r+7}], {c}")
    e(f"""s_add_u32 s11, s72, 1
          s_lshl_b32 s16, s13, 4
          s_lshl_b32 s17, s9, 2
          s_add_u32 s16, s16, s17
          v_add_u32 v10, s16, v3
          s_cmp_eq_u32 s12, 1
          s_cbranch_scc0 L_pub_gu
          v_lshl_add_u32 v10, v2, 10, v10
          v_lshlrev_b32 v10, 4, v10
          s_mov_b32 s16, {WSQ}
          s_branch L_pub
          L_pub_gu:
          v_mul_u32_u24 v11, 4682, v10
          v_lshrrev_b32 v11, 16, v11
          v_mul_u32_u24 v12, 14, v11
          v_sub_u32 v10, v10, v12
          v_lshl_add_u32 v11, v11, 3, v2
          v_mul_u32_u24 v11, 14, v11
          v_add_lshl_u32 v10, v10, v11, 4
          s_mov_b32 s16, {WSU}
          s_cmp_eq_u32 s12, 2
          s_cselect_b32 s16, {WSG}, s16
          L_pub:
          v_cvt_pk_bf16_f32 v12, v32, v33
          v_mov_b32 v13, s11
          v_cvt_pk_bf16_f32 v14, v34, v35
          v_mov_b32 v15, s11
          s_mov_b32 exec_lo, 0x00ff00ff
          s_mov_b32 exec_hi, 0x00ff00ff
          buffer_store_dwordx4 v[12:15], v10, s[48:51], s16 offen sc1
          s_mov_b64 exec, -1""")
    stamp(3)

    e.label("L_att")
    def slots(name, body):
        for j in range(5):
            if j < 2:
                e(f"s_cmp_gt_u32 s10, {j}")
                e(f"s_cbranch_scc1 L_{name}_{j+1}")
            body(j)
            if j < 2:
                e.label(f"L_{name}_{j+1}")
    def kload(j):
        for q, off in enumerate((0, 128, 2048, 2176)):
            e(f"buffer_load_dwordx4 {vr(KS(j)+4*q,4)}, v4, s[40:43], s{20+j} offen offset:{off} nt")
    def vload(j):
        for q in range(4):
            e(f"buffer_load_dwordx4 {vr(VS(j)+4*q,4)}, v5, s[44:47], s{20+j} offen offset:{q*256} nt")
    slots("kl", kload)
    e(f"""v_lshlrev_b32 v16, 4, v1
          s_lshl_b32 s26, s6, 14
          s_lshl_b32 s27, s4, 11
          s_add_u32 s26, s26, s27
          s_add_u32 s26, s26, {WSQ}
          s_cmp_lt_u32 s8, 4
          s_cbranch_scc1 L_noq1
          buffer_load_dwordx4 v[8:11], v16, s[48:51], s26 offen sc1
          buffer_load_dwordx4 v[12:15], v16, s[48:51], s26 offen offset:1024 sc1
          L_noq1:""")
    slots("vl", vload)
    stamp(4)
    e(f"""s_waitcnt lgkmcnt(0)
          s_add_u32 s11, s72, 1
          s_cmp_lt_u32 s8, 4
          s_cbranch_scc1 L_qpoll
          s_lshl_b32 s16, s4, 2
          s_lshr_b32 s17, s5, 3
          s_add_u32 s16, s16, s17
          s_lshl_b32 s16, s16, 7
          s_bfe_u32 s17, s5, 0x10002
          s_lshl_b32 s17, s17, 2
          s_add_u32 s16, s16, s17
          s_lshl_b32 s17, s9, 5
          s_add_u32 s16, s16, s17
          s_lshl_b32 s16, s16, 10
          s_lshl_b32 s17, s7, 8
          s_add_u32 s16, s16, s17
          v_lshrrev_b32 v17, 1, v3
          v_lshlrev_b32 v17, 5, v17
          v_xor_b32 v17, v17, v5
          s_lshl_b32 s17, s9, 12
          s_add_u32 s17, s17, {L_WO}""")
    for q in range(4):
        e(f"""s_add_u32 m0, s17, {q*1024}
              v_xor_b32 v18, {64*q}, v17
              buffer_load_dwordx4 v18, s[56:59], s16 offen nt lds
              s_add_u32 s16, s16, 8192""")
    e(f"""; w_down: rows 56*i + 8*I + (l>>3), I = 2a, 2a+1 ; col bytes x*128
          v_lshrrev_b32 v17, 3, v1
          v_lshlrev_b32 v17, 10, v17
          v_lshlrev_b32 v18, 1, v3
          v_and_b32 v19, 7, v1
          v_xor_b32 v18, v18, v19
          v_lshl_add_u32 v17, v18, 4, v17
          s_mul_i32 s16, s5, {56*1024}
          s_lshl_b32 s17, s9, 14
          s_add_u32 s16, s16, s17
          s_lshl_b32 s17, s4, 7
          s_add_u32 s16, s16, s17
          s_lshl_b32 s17, s9, 11
          s_add_u32 m0, s17, {L_WD}
          s_add_u32 s18, s16, 8192
          buffer_load_dwordx4 v17, s[60:63], s16 offen nt lds
          s_cmp_eq_u32 s9, 3
          s_cselect_b32 s18, 0x7fff0000, s18
          s_add_u32 m0, s17, {L_WD+1024}
          s_nop 0
          buffer_load_dwordx4 v17, s[60:63], s18 offen nt lds
          s_waitcnt vmcnt(22)
          s_branch L_qcheck
          L_qpoll:
          buffer_load_dwordx4 v[8:11], v16, s[48:51], s26 offen sc1
          buffer_load_dwordx4 v[12:15], v16, s[48:51], s26 offen offset:1024 sc1
          s_waitcnt vmcnt(0)
          L_qcheck:""")
    tagacc(True, [9, 11, 13, 15])
    e("""v_cmp_ne_u32 vcc, 0, v6
         s_cmp_eq_u64 vcc, 0
         s_cbranch_scc1 L_qok""")
    spin_check("L_qpoll", 4)
    e.label("L_qok")
    stamp(5)
    e(f"""s_lshl_b32 s16, s8, 10
          s_add_u32 s16, s16, {L_QS}
          v_lshl_add_u32 v17, v1, 3, s16
          ds_write2_b32 v17, v8, v10 offset0:0 offset1:1
          ds_write2_b32 v17, v12, v14 offset0:128 offset1:129
          v_and_b32 v18, 3, v2
          v_lshlrev_b32 v18, 8, v18
          v_lshrrev_b32 v19, 3, v2
          v_lshl_add_u32 v18, v19, 6, v18
          v_lshl_add_u32 v18, v3, 4, v18
          v_add_u32 v18, s16, v18
          ds_read_b128 v[40:43], v18
          ds_read_b128 v[44:47], v18 offset:128
          v_lshrrev_b32 v19, 2, v2
          v_and_b32 v20, 1, v19
          v_lshlrev_b32 v20, 4, v20
          v_mov_b32 v21, 0xffff
          v_lshlrev_b32 v20, v20, v21
          v_cmp_gt_u32 vcc, 2, v19
          v_cndmask_b32 v48, 0, v20, vcc
          v_cndmask_b32 v49, v20, 0, vcc
          v_mov_b32 v50, 0xff800000
          s_mov_b32 s28, 0x3db504f3
          s_waitcnt lgkmcnt(0)""")
    def qk(j):
        k = KS(j); s = SC(j)
        e(f"""v_mfma_f32_16x16x32_bf16 v[244:247], {vr(k,4)}, v[40:43], 0
              v_mfma_f32_16x16x32_bf16 v[248:251], {vr(k+8,4)}, v[40:43], 0
              v_mfma_f32_16x16x32_bf16 v[244:247], {vr(k+4,4)}, v[44:47], v[244:247]
              v_mfma_f32_16x16x32_bf16 v[248:251], {vr(k+12,4)}, v[44:47], v[248:251]""")
        for r in range(4):
            e(f"v_permlane32_swap_b32 v{244+r}, v{248+r}")
        for r in range(4):
            e(f"v_add_f32_dpp v{s+r}, v{248+r}, v{244+r} row_ror:8 row_mask:0xf bank_mask:0xf")
        for r in range(4):
            e(f"v_mov_b32_dpp v{s+r}, v{s+r} row_ror:8 row_mask:0xf bank_mask:0xc")
        e(f"""v_cvt_pk_bf16_f32 v252, v{s}, v{s+1}
              v_cvt_pk_bf16_f32 v253, v{s+2}, v{s+3}
              v_lshlrev_b32 v{s}, 16, v252
              v_and_b32 v{s+1}, 0xffff0000, v252
              v_lshlrev_b32 v{s+2}, 16, v253
              v_and_b32 v{s+3}, 0xffff0000, v253
              v_mul_f32 v{s}, s28, v{s}
              v_mul_f32 v{s+1}, s28, v{s+1}
              v_mul_f32 v{s+2}, s28, v{s+2}
              v_mul_f32 v{s+3}, s28, v{s+3}
              v_cvt_pk_bf16_f32 v252, v{s}, v{s+1}
              v_cvt_pk_bf16_f32 v253, v{s+2}, v{s+3}
              v_lshlrev_b32 v{s}, 16, v252
              v_and_b32 v{s+1}, 0xffff0000, v252
              v_lshlrev_b32 v{s+2}, 16, v253
              v_and_b32 v{s+3}, 0xffff0000, v253
              v_max3_f32 v50, v50, v{s}, v{s+1}
              v_max3_f32 v50, v50, v{s+2}, v{s+3}""")
    slots("qk", qk)
    e(f"""v_mov_b32 v51, v50
          v_permlane32_swap_b32 v50, v51
          v_max_f32 v50, v50, v51
          v_mov_b32 v51, v50
          v_permlane16_swap_b32 v50, v51
          v_max_f32 v50, v50, v51
          v_lshlrev_b32 v17, 2, v1
          v_mov_b32 v19, 1
          s_mov_b64 exec, 15
          ds_max_f32 v17, v50 offset:{L_MACC}
          s_mov_b64 exec, 1
          ds_add_u32 v7, v19 offset:{L_CNT+4}
          s_mov_b64 exec, -1
          v_and_b32 v18, 3, v1
          v_lshlrev_b32 v18, 2, v18""")
    stamp(6)
    e(f"""s_cmp_ge_u32 s8, 4
          s_cbranch_scc1 L_nogu
          ; lanes: b = 2a + ((l>>4)&1), e = l&15 (<14), l<32
          v_and_b32 v20, 1, v3
          s_lshl_b32 s16, s9, 1
          v_add_u32 v20, s16, v20
          v_mul_u32_u24 v21, 14, v20
          v_add_lshl_u32 v21, v21, v2, 4
          s_mul_i32 s16, s5, {8*14*16}
          s_add_u32 s17, s16, {WSU}
          s_add_u32 s16, s16, {WSG}
          v_mov_b32 v22, 0
          v_mov_b32 v23, 0
          s_mov_b32 exec_lo, 0x3fff3fff
          s_mov_b32 exec_hi, 0
          L_gupoll:
          buffer_load_dwordx4 v[8:11], v21, s[48:51], s16 offen sc1
          buffer_load_dwordx4 v[12:15], v21, s[48:51], s17 offen sc1
          s_waitcnt vmcnt(0)""")
    tagacc(True, [9, 11, 13, 15])
    e("""v_cmp_ne_u32 vcc, 0, v6
         s_cmp_eq_u64 vcc, 0
         s_cbranch_scc1 L_guok""")
    spin_check("L_gupoll", 4)
    e.label("L_guok")
    e("""s_mov_b32 s16, 0xbfb8aa3b
         v_lshlrev_b32 v24, 16, v8
         v_and_b32 v25, 0xffff0000, v8
         v_lshlrev_b32 v26, 16, v10
         v_and_b32 v27, 0xffff0000, v10""")
    for k in range(4): e(f"v_mul_f32 v{24+k}, s16, v{24+k}")
    for k in range(4): e(f"v_exp_f32 v{24+k}, v{24+k}")
    for k in range(4): e(f"v_add_f32 v{24+k}, 1.0, v{24+k}")
    for k in range(4): e(f"v_rcp_f32 v{24+k}, v{24+k}")
    e(f"""v_cvt_pk_bf16_f32 v8, v24, v25
          v_cvt_pk_bf16_f32 v10, v26, v27
          v_lshlrev_b32 v24, 16, v8
          v_and_b32 v25, 0xffff0000, v8
          v_lshlrev_b32 v26, 16, v10
          v_and_b32 v27, 0xffff0000, v10
          v_lshlrev_b32 v28, 16, v12
          v_and_b32 v29, 0xffff0000, v12
          v_lshlrev_b32 v30, 16, v14
          v_and_b32 v31, 0xffff0000, v14
          v_mul_f32 v24, v24, v28
          v_mul_f32 v25, v25, v29
          v_mul_f32 v26, v26, v30
          v_mul_f32 v27, v27, v31
          v_cvt_pk_bf16_f32 v22, v24, v25
          v_cvt_pk_bf16_f32 v23, v26, v27
          s_mov_b32 exec_lo, -1
          v_mul_u32_u24 v20, 144, v20
          v_lshrrev_b32 v21, 3, v2
          v_lshl_add_u32 v20, v21, 6, v20
          v_and_b32 v21, 3, v2
          v_lshl_add_u32 v20, v21, 4, v20
          v_bfe_u32 v21, v2, 2, 1
          v_lshl_add_u32 v20, v21, 3, v20
          ds_write_b64 v20, v[22:23] offset:{L_HB}
          s_mov_b64 exec, -1
          L_nogu:""")
    lds_spin(L_CNT + 4, 8, f"ds_read_b32 v50, v18 offset:{L_MACC}")
    stamp(7)
    e("""s_mov_b32 s28, 0x3fb8aa3b
         v_mul_f32 v52, s28, v50
         v_mov_b32 v51, 0
         v_mov_b32 v32, 0
         v_mov_b32 v33, 0
         v_mov_b32 v34, 0
         v_mov_b32 v35, 0
         v_mov_b32 v36, 0
         v_mov_b32 v37, 0
         v_mov_b32 v38, 0
         v_mov_b32 v39, 0""")
    def sm(j):
        s = SC(j); k = KS(j)
        for r in range(4): e(f"v_fma_f32 v{s+r}, v{s+r}, s28, -v52")
        for r in range(4): e(f"v_exp_f32 v{s+r}, v{s+r}")
        e(f"""v_add_f32 v252, v{s}, v{s+1}
              v_add_f32 v253, v{s+2}, v{s+3}
              v_add_f32 v51, v51, v252
              v_add_f32 v51, v51, v253""")
        for r in range(4): e(f"v_cvt_pk_bf16_f32 v{s+r}, v{s+r}, v{s+r}")
        for r in range(4):
            e(f"v_and_b32 v{k+2*r}, v{s+r}, v48")
            e(f"v_and_b32 v{k+2*r+1}, v{s+r}, v49")
    slots("sm", sm)
    e(f"""v_mov_b32 v53, v51
          v_permlane32_swap_b32 v51, v53
          v_add_f32 v51, v51, v53
          v_mov_b32 v53, v51
          v_permlane16_swap_b32 v51, v53
          v_add_f32 v51, v51, v53
          s_mov_b64 exec, 15
          ds_add_f32 v17, v51 offset:{L_LACC}
          s_mov_b64 exec, 1
          ds_add_u32 v7, v19 offset:{L_CNT+8}
          s_mov_b64 exec, -1""")
    def pv(j):
        v = VS(j); k = KS(j)
        e(f"s_waitcnt vmcnt({4*(4-j)+6})")
        e(f"""v_swap_b32 v{v+2}, v{v+4}
              v_swap_b32 v{v+3}, v{v+5}
              v_swap_b32 v{v+10}, v{v+12}
              v_swap_b32 v{v+11}, v{v+13}
              v_mfma_f32_16x16x32_bf16 v[32:35], {vr(v,4)}, {vr(k,4)}, v[32:35]
              v_mfma_f32_16x16x32_bf16 v[36:39], {vr(v+4,4)}, {vr(k,4)}, v[36:39]
              v_mfma_f32_16x16x32_bf16 v[32:35], {vr(v+8,4)}, {vr(k+4,4)}, v[32:35]
              v_mfma_f32_16x16x32_bf16 v[36:39], {vr(v+12,4)}, {vr(k+4,4)}, v[36:39]""")
    e(f"""v_add_u32 v20, v1, v3
          v_lshlrev_b32 v20, 4, v20
          s_mul_i32 s16, s8, 2304
          s_add_u32 s16, s16, {L_PO}
          v_add_u32 v20, s16, v20""")
    slots("pv", pv)
    stamp(8)
    e(f"""ds_write_b128 v20, v[32:35]
          ds_write_b128 v20, v[36:39] offset:1152
          s_mov_b64 exec, 1
          ds_add_u32 v7, v19 offset:{L_CNT+12}
          s_mov_b64 exec, -1
          s_cmp_lt_u32 s8, 4
          s_cbranch_scc1 L_older
          v_lshrrev_b32 v20, 5, v1
          v_mul_u32_u24 v20, 1152, v20
          v_bfe_u32 v21, v1, 3, 2
          v_mul_u32_u24 v21, 272, v21
          v_add_u32 v20, v20, v21
          v_bfe_u32 v21, v1, 1, 2
          v_lshl_add_u32 v20, v21, 6, v20
          v_and_b32 v21, 1, v1
          v_lshl_add_u32 v20, v21, 3, v20
          s_lshl_b32 s16, s9, 4
          s_add_u32 s16, s16, {L_PO}
          v_add_u32 v20, s16, v20
          s_lshl_b32 s16, s4, 5
          s_add_u32 s16, s16, s5
          s_lshl_b32 s16, s16, 12
          s_lshl_b32 s17, s9, 10
          s_add_u32 s16, s16, s17
          s_add_u32 s16, s16, {WOP}
          v_mov_b32 v9, s11
          v_mov_b32 v11, s11""")
    lds_spin(L_CNT + 12, 8, "\n".join(f"ds_read_b64 v[{64+2*w}:{65+2*w}], v20 offset:{w*2304}" for w in range(8)))
    e(f"""v_pk_add_f32 v[64:65], v[64:65], v[66:67]
          v_pk_add_f32 v[68:69], v[68:69], v[70:71]
          v_pk_add_f32 v[72:73], v[72:73], v[74:75]
          v_pk_add_f32 v[76:77], v[76:77], v[78:79]
          v_pk_add_f32 v[64:65], v[64:65], v[68:69]
          v_pk_add_f32 v[72:73], v[72:73], v[76:77]
          v_add_f32 v8, v64, v72
          v_add_f32 v10, v65, v73
          buffer_store_dwordx4 v[8:11], v16, s[48:51], s16 offen sc1""")
    stamp(9)
    e(f"""; A (w_down) tr address: WD + (4g + (n>>2))*128 + ((a ^ ((2g+(n>>3))&3))*32) + (n&3)*8
          v_lshrrev_b32 v21, 2, v2
          v_lshl_add_u32 v21, v3, 2, v21
          v_lshlrev_b32 v22, 7, v21
          v_bfe_u32 v21, v21, 1, 2
          v_xor_b32 v21, s9, v21
          v_lshl_add_u32 v22, v21, 5, v22
          v_and_b32 v21, 3, v2
          v_lshl_add_u32 v22, v21, 3, v22
          v_and_b32 v23, 7, v2
          v_mul_u32_u24 v23, 144, v23
          v_lshl_add_u32 v23, v3, 4, v23
          s_mov_b32 s16, {32*96*128}
          v_mul_lo_u32 v24, v2, s16
          v_lshl_add_u32 v24, v3, 4, v24
          s_lshl_b32 s16, s4, 2
          s_add_u32 s16, s16, s9
          s_mul_i32 s16, s16, 96
          s_add_u32 s16, s16, s5
          s_add_u32 s16, s16, 64
          s_lshl_b32 s16, s16, 7
          s_add_u32 s16, s16, {WSB}
          v_mov_b32 v13, s11
          v_mov_b32 v15, s11
          s_waitcnt vmcnt(0)
          s_barrier
          ds_read_b64_tr_b16 v[64:65], v22 offset:{L_WD}
          ds_read_b64_tr_b16 v[66:67], v22 offset:{L_WD+2048}
          ds_read_b128 v[72:75], v23 offset:{L_HB}
          ds_read_b64_tr_b16 v[68:69], v22 offset:{L_WD+4096}
          ds_read_b64_tr_b16 v[70:71], v22 offset:{L_WD+6144}
          ds_read_b128 v[76:79], v23 offset:{L_HB+64}
          s_waitcnt lgkmcnt(3)
          v_mfma_f32_16x16x32_bf16 v[32:35], v[64:67], v[72:75], 0
          s_waitcnt lgkmcnt(0)
          v_mfma_f32_16x16x32_bf16 v[32:35], v[68:71], v[76:79], v[32:35]
          s_mov_b32 exec_lo, 0x00ff00ff
          s_mov_b32 exec_hi, 0x00ff00ff
          v_mov_b32 v8, v32
          v_mov_b32 v10, v33
          v_mov_b32 v12, v34
          v_mov_b32 v14, v35
          buffer_store_dwordx4 v[8:11], v24, s[48:51], s16 offen sc1
          buffer_store_dwordx4 v[12:15], v24, s[48:51], s16 offen offset:64 sc1
          s_mov_b64 exec, -1
          s_cmp_lg_u32 s8, 4
          s_cbranch_scc1 L_done
          s_lshl_b32 s17, s7, 3
          s_add_u32 s17, s17, s4
          s_lshl_b32 s16, s6, 5
          s_add_u32 s16, s16, s17
          s_lshl_b32 s18, s16, 5
          v_and_b32 v20, 3, v1
          v_lshlrev_b32 v20, 3, v20
          v_bfe_u32 v21, v1, 2, 1
          v_lshl_add_u32 v20, v21, 2, v20
          buffer_load_dword v22, v20, s[64:67], s18 offen
          s_mul_i32 s16, s16, {96*128}
          s_add_u32 s16, s16, {WSB}
          s_add_u32 s17, s16, 4096
          s_add_u32 s19, s16, 8192
          L_fpoll:""")
    for j in range(12):
        e(f"buffer_load_dwordx4 {vr(64+4*j,4)}, v16, s[48:51], s{(16,17,19)[j//4]} offen offset:{(j%4)*1024} sc1")
    e("s_waitcnt vmcnt(0)")
    tagacc(True, [64 + 4*j + t for j in range(12) for t in (1, 3)])
    e("""v_cmp_ne_u32 vcc, 0, v6
         s_cmp_eq_u64 vcc, 0
         s_cbranch_scc1 L_fok""")
    spin_check("L_fpoll", 1)
    e.label("L_fok")
    stamp(11)
    for (base, n) in ((64, 8), (96, 4)):
        st = 1
        while st < n:
            for j in range(0, n, 2 * st):
                e(f"v_add_f32 v{base+4*j}, v{base+4*j}, v{base+4*(j+st)}")
                e(f"v_add_f32 v{base+4*j+2}, v{base+4*j+2}, v{base+4*(j+st)+2}")
            st *= 2
    R = (64, 66, 96, 98)
    for r in R: e(f"v_add_f32_dpp v{r}, v{r}, v{r} row_ror:8 row_mask:0xf bank_mask:0xf")
    for r in R: e(f"v_mov_b32 v{r+1}, v{r}")
    for r in R: e(f"v_permlane16_swap_b32 v{r}, v{r+1}")
    for r in R: e(f"v_add_f32 v{r}, v{r}, v{r+1}")
    for r in R: e(f"v_mov_b32 v{r+1}, v{r}")
    for r in R: e(f"v_permlane32_swap_b32 v{r}, v{r+1}")
    for r in R: e(f"v_add_f32 v{r}, v{r}, v{r+1}")
    e(f"""v_cvt_pk_bf16_f32 v8, v64, v66
          v_cvt_pk_bf16_f32 v9, v96, v98
          s_mov_b32 s16, 0xbfb8aa3b
          v_lshlrev_b32 v10, 16, v9
          v_and_b32 v11, 0xffff0000, v9
          v_mul_f32 v12, s16, v10
          v_mul_f32 v13, s16, v11
          v_exp_f32 v12, v12
          v_exp_f32 v13, v13
          v_add_f32 v12, 1.0, v12
          v_add_f32 v13, 1.0, v13
          v_rcp_f32 v12, v12
          v_rcp_f32 v13, v13
          v_mul_f32 v10, v10, v12
          v_mul_f32 v11, v11, v13
          v_cvt_pk_bf16_f32 v9, v10, v11
          v_lshlrev_b32 v10, 16, v9
          v_and_b32 v11, 0xffff0000, v9
          v_lshlrev_b32 v12, 16, v8
          v_and_b32 v13, 0xffff0000, v8
          v_mul_f32 v10, v10, v12
          v_mul_f32 v11, v11, v13
          v_cvt_pk_bf16_f32 v9, v10, v11
          v_lshlrev_b32 v10, 16, v9
          v_and_b32 v11, 0xffff0000, v9
          v_lshlrev_b32 v12, 16, v22
          v_and_b32 v13, 0xffff0000, v22
          v_add_f32 v10, v10, v12
          v_add_f32 v11, v11, v13
          v_cvt_pk_bf16_f32 v9, v10, v11
          s_mov_b64 exec, 0xff
          buffer_store_dword v9, v20, s[68:71], s18 offen
          s_cmp_lg_u32 s2, 0
          s_cbranch_scc1 L_done
          s_mov_b64 exec, 1
          v_mov_b32 v9, s11
          buffer_store_dword v9, v7, s[48:51], 0 offen sc1
          s_branch L_done""")

    e.label("L_older")
    e(f"""s_cmp_lg_u32 s8, 0
          s_cbranch_scc1 L_noml""")
    lds_spin(L_CNT + 8, 8, f"ds_read_b32 v10, v18 offset:{L_LACC}")
    e(f"""; ML[(x*4+h)*32 + i] = (m, tag, l, tag), lanes 0..3
          v_mov_b32 v8, v50
          v_mov_b32 v9, s11
          v_mov_b32 v11, s11
          v_lshlrev_b32 v20, 9, v1
          s_lshl_b32 s16, s4, 7
          s_add_u32 s16, s16, s5
          s_lshl_b32 s16, s16, 4
          s_add_u32 s16, s16, {WML}
          s_mov_b64 exec, 15
          buffer_store_dwordx4 v[8:11], v20, s[48:51], s16 offen sc1
          s_mov_b64 exec, -1
          L_noml:
          v_lshrrev_b32 v21, 5, v1
          v_lshlrev_b32 v20, 6, v21
          v_and_b32 v22, 3, v1
          v_lshl_add_u32 v20, v22, 4, v20
          s_lshl_b32 s16, s4, 2
          s_lshr_b32 s17, s5, 3
          s_add_u32 s16, s16, s17
          s_lshl_b32 s16, s16, 9
          s_lshl_b32 s18, s9, 7
          s_add_u32 s16, s16, s18
          s_add_u32 s16, s16, {WML}
          v_lshlrev_b32 v23, 14, v21
          v_and_b32 v22, 31, v1
          v_lshl_add_u32 v23, v22, 4, v23
          s_lshl_b32 s28, s4, 17
          s_lshl_b32 s18, s9, 15
          s_add_u32 s28, s28, s18
          s_lshr_b32 s18, s5, 2
          s_lshl_b32 s18, s18, 9
          s_add_u32 s28, s28, s18
          s_add_u32 s28, s28, {WOP}
          s_add_u32 s29, s28, 4096
          s_add_u32 s30, s28, 8192
          s_add_u32 s31, s28, 12288
          s_lshl_b32 s18, s9, 1
          v_add_u32 v21, s18, v21
          v_mul_u32_u24 v24, 144, v21
          v_lshl_add_u32 v24, v22, 2, v24
          v_and_b32 v25, 7, v2
          v_mul_u32_u24 v25, 144, v25
          v_lshl_add_u32 v25, v3, 4, v25
          v_lshrrev_b32 v26, 1, v3
          v_lshlrev_b32 v26, 4, v26
          v_lshrrev_b32 v27, 2, v2
          v_lshl_add_u32 v26, v27, 2, v26
          v_and_b32 v28, 1, v3
          v_lshl_add_u32 v26, v28, 1, v26
          v_lshlrev_b32 v26, 8, v26
          v_lshl_add_u32 v27, v27, 1, v28
          v_and_b32 v28, 3, v2
          v_lshl_add_u32 v26, v28, 3, v26
          v_xor_b32 v27, s18, v27
          v_lshl_add_u32 v28, v27, 5, v26
          v_xor_b32 v27, 1, v27
          v_lshl_add_u32 v27, v27, 5, v26
          v_add_u32 v26, {L_WO}, v28
          v_add_u32 v27, {L_WO}, v27
          s_mov_b32 s17, {32*96*128}
          v_mul_lo_u32 v28, v2, s17
          v_lshl_add_u32 v28, v3, 4, v28
          s_lshl_b32 s17, s7, 3
          s_add_u32 s17, s17, s18
          s_mul_i32 s17, s17, 96
          s_lshl_b32 s19, s4, 3
          s_add_u32 s17, s17, s19
          s_lshr_b32 s19, s5, 2
          s_add_u32 s17, s17, s19
          s_lshl_b32 s17, s17, 7
          s_add_u32 s24, s17, {WSB}
          s_add_u32 s25, s24, {96*128}
          L_mlpoll:
          buffer_load_dwordx4 v[8:11], v20, s[48:51], s16 offen sc1
          s_waitcnt vmcnt(0)""")
    tagacc(True, [9, 11])
    e("""v_cmp_ne_u32 vcc, 0, v6
         s_cmp_eq_u64 vcc, 0
         s_cbranch_scc1 L_mlok""")
    spin_check("L_mlpoll", 2)
    e.label("L_mlok")
    e("""s_mov_b32 s19, 0x3fb8aa3b
         v_max_f32_dpp v12, v8, v8 quad_perm:[1,0,3,2] row_mask:0xf bank_mask:0xf
         v_max_f32_dpp v12, v12, v12 quad_perm:[2,3,0,1] row_mask:0xf bank_mask:0xf
         v_sub_f32 v12, v8, v12
         v_mul_f32 v12, s19, v12
         v_exp_f32 v12, v12
         v_mul_f32 v13, v12, v10
         v_add_f32_dpp v13, v13, v13 quad_perm:[1,0,3,2] row_mask:0xf bank_mask:0xf
         v_add_f32_dpp v13, v13, v13 quad_perm:[2,3,0,1] row_mask:0xf bank_mask:0xf
         v_rcp_f32 v13, v13
         v_mul_f32 v12, v12, v13
         v_mov_b32_dpp v52, v12 quad_perm:[0,0,0,0] row_mask:0xf bank_mask:0xf
         v_mov_b32_dpp v53, v12 quad_perm:[1,1,1,1] row_mask:0xf bank_mask:0xf
         v_mov_b32_dpp v54, v12 quad_perm:[2,2,2,2] row_mask:0xf bank_mask:0xf
         v_mov_b32_dpp v55, v12 quad_perm:[3,3,3,3] row_mask:0xf bank_mask:0xf
         v_mov_b32 v9, s11
         v_mov_b32 v11, s11
         v_mov_b32 v13, s11
         v_mov_b32 v15, s11
         v_mov_b32 v57, s11
         v_mov_b32 v59, s11
         v_mov_b32 v61, s11
         v_mov_b32 v63, s11""")
    lds_spin(L_CNT + 12, 8)
    stamp(9)
    e.label("L_apoll")
    for s_ in range(4):
        e(f"buffer_load_dwordx4 {vr(64+4*s_,4)}, v23, s[48:51], s{28+s_} offen sc1")
    e("s_waitcnt vmcnt(0)")
    tagacc(True, [64 + 4*j + t for j in range(4) for t in (1, 3)])
    e("""v_cmp_ne_u32 vcc, 0, v6
         s_cmp_eq_u64 vcc, 0
         s_cbranch_scc1 L_aok""")
    spin_check("L_apoll", 1)
    e.label("L_aok")
    stamp(10)
    e(f"""v_mul_f32 v64, v64, v52
          v_mul_f32 v66, v66, v52
          v_fmac_f32 v64, v68, v53
          v_fmac_f32 v66, v70, v53
          v_fmac_f32 v64, v72, v54
          v_fmac_f32 v66, v74, v54
          v_fmac_f32 v64, v76, v55
          v_fmac_f32 v66, v78, v55
          v_cvt_pk_bf16_f32 v64, v64, v66
          ds_write_b32 v24, v64 offset:{L_OB}
          s_waitcnt lgkmcnt(0)
          s_barrier
          ds_read_b128 v[96:99], v25 offset:{L_OB}
          ds_read_b64_tr_b16 v[64:65], v26
          ds_read_b64_tr_b16 v[66:67], v26 offset:256
          ds_read_b64_tr_b16 v[72:73], v27
          ds_read_b64_tr_b16 v[74:75], v27 offset:256
          ds_read_b128 v[100:103], v25 offset:{L_OB+64}
          ds_read_b64_tr_b16 v[68:69], v26 offset:8192
          ds_read_b64_tr_b16 v[70:71], v26 offset:8448
          ds_read_b64_tr_b16 v[76:77], v27 offset:8192
          ds_read_b64_tr_b16 v[78:79], v27 offset:8448
          s_waitcnt lgkmcnt(5)
          v_mfma_f32_16x16x32_bf16 v[32:35], v[64:67], v[96:99], 0
          v_mfma_f32_16x16x32_bf16 v[36:39], v[72:75], v[96:99], 0
          s_waitcnt lgkmcnt(0)
          v_mfma_f32_16x16x32_bf16 v[32:35], v[68:71], v[100:103], v[32:35]
          v_mfma_f32_16x16x32_bf16 v[36:39], v[76:79], v[100:103], v[36:39]
          s_mov_b32 exec_lo, 0x00ff00ff
          s_mov_b32 exec_hi, 0x00ff00ff
          v_mov_b32 v8, v32
          v_mov_b32 v10, v33
          v_mov_b32 v12, v34
          v_mov_b32 v14, v35
          buffer_store_dwordx4 v[8:11], v28, s[48:51], s24 offen sc1
          buffer_store_dwordx4 v[12:15], v28, s[48:51], s24 offen offset:64 sc1
          v_mov_b32 v56, v36
          v_mov_b32 v58, v37
          v_mov_b32 v60, v38
          v_mov_b32 v62, v39
          buffer_store_dwordx4 v[56:59], v28, s[48:51], s25 offen sc1
          buffer_store_dwordx4 v[60:63], v28, s[48:51], s25 offen offset:64 sc1
          s_branch L_done""")
    e.label("L_bail")
    e(f"""s_load_dwordx2 s[16:17], s[0:1], 80
          s_mov_b64 exec, 1
          v_mov_b32 v8, 1
          v_mov_b32 v9, 0
          s_waitcnt lgkmcnt(0)
          global_atomic_add v9, v8, s[16:17]""")
    e.label("L_done")
    if stamps:
        stamp(12)
        e(f"""s_mov_b64 exec, 0xffff
              s_lshl_b32 s16, s2, 3
              s_add_u32 s16, s16, s8
              s_lshl_b32 s16, s16, 6
              s_add_u32 s16, s16, {WSTAMP}
              v_lshlrev_b32 v7, 2, v1
              buffer_store_dword v255, v7, s[48:51], s16 offen""")
    e.label("L_end")
    e("s_endpgm")
    e.raw('.section .rodata,"a"'); e.raw(".p2align 6"); e.raw(f".amdhsa_kernel {KNAME}")
    e.raw("  .amdhsa_next_free_vgpr 256"); e.raw("  .amdhsa_next_free_sgpr 102"); e.raw("  .amdhsa_accum_offset 256")
    e.raw("  .amdhsa_group_segment_fixed_size 0"); e.raw("  .amdhsa_kernarg_size 96"); e.raw("  .amdhsa_user_sgpr_count 2")
    e.raw("  .amdhsa_user_sgpr_kernarg_segment_ptr 1"); e.raw("  .amdhsa_system_sgpr_workgroup_id_x 1")
    e.raw("  .amdhsa_float_denorm_mode_32 3")
    e.raw(".end_amdhsa_kernel")
    return e.text()

if __name__ == "__main__":
    open("k1.s", "w").write(gen(spin_limit=200000))
    open("k1_st.s", "w").write(gen(stamps=True, spin_limit=200000))
    print("LDS", LDS_TOTAL)
```

```python
import sys
from emit import Emitter
KNAME = "recurrent_scan__sliding_block_cached__glu_gated_glu__decode_kernel"

WS_EPOCH = 0
WPL = 0x4000
WML = 0x8000
WSQ = 0x10000
WSG = 0x90000
GUSZ = 28 * 4096
WOP = 0x100000
WSB = 0x200000
WSTAMP = 0x600000
WS_SIZE = 0x800000
NSLOT = 64
SBROW = 32 * NSLOT * 128

C_U, C_M, C_L, C_P, C_D, C_O, C_Q, C_X = 0, 4, 8, 12, 64, 68, 72, 76
L_MACC = 16
L_LACC = 32
L_PF = 48
L_QS = 256
L_XN = L_QS + 1024
L_OB = L_XN + 8320
L_HB = L_OB + 2176
L_PO = L_HB + 1152
L_WO = ((L_PO + 4 * 2304 + 1023) // 1024) * 1024
L_WD = L_WO + 16384
NS = 8
L_P = L_WD + 8192
L_U = L_P + 16384
LDS_TOTAL = L_U + 32768

TS = lambda j: 64 + 16 * j
PR = lambda j: 192 + 4 * j
def vr(a, n): return f"v[{a}:{a+n-1}]"

def gen(stamps=False, spin_limit=2000000, QSLEEP=12, ASLEEP=(6, 1), FSLEEP=(6, 1), FDELAY=16, WSOFF=0, DLATE=False, LDSMIN=0):
    e = Emitter()
    for ln in open("recurrent_scan__sliding_block_cached__glu_gated_glu__decode.s.ref"):
        if ln.startswith("; @launch") or not ln.startswith(";"): break
        e.raw(ln.rstrip("\n"))
    e.raw(f"; @launch grid=(256,1,1) block=(512,1,1) lds={max(LDS_TOTAL, LDSMIN)}")
    e.raw('.amdgcn_target "amdgcn-amd-amdhsa--gfx950"')
    e.raw(".text"); e.raw(f".globl {KNAME}"); e.raw(".p2align 8"); e.raw(f".type {KNAME},@function")
    e.label(KNAME)
    SV = "v31"
    def stamp(k):
        if stamps:
            e(f"s_memrealtime s[84:85]")
            e("s_waitcnt lgkmcnt(0)")
            e(f"v_writelane_b32 {SV}, s84, {k}")
    def lds_spin(addr, cnt_off, target, extra_reads="", sleep=1):
        L = e.newlabel("L_spin"); D = e.newlabel("L_spun")
        e.label(L)
        e(f"ds_read_b32 v6, {addr} offset:{cnt_off}")
        if extra_reads: e(extra_reads)
        e(f"""s_waitcnt lgkmcnt(0)
              v_readfirstlane_b32 s3, v6
              s_cmp_eq_u32 s3, {target}
              s_cbranch_scc1 {D}
              s_sub_u32 s82, s82, 1
              s_cbranch_scc1 L_bail""")
        if sleep: e(f"s_sleep {sleep}")
        e(f"s_branch {L}")
        e.label(D)
    def cnt_inc(off):
        e(f"""s_mov_b64 exec, 1
              ds_add_u32 v7, v19 offset:{off}
              s_mov_b64 exec, -1""")
    def poll_init(loads, masks, init=None):
        for (d, t), m in zip(loads, masks):
            e(f"v_not_b32 v{d+1}, s11")
            if init is None: e(f"s_mov_b64 s[{m}:{m+1}], -1")
            else:
                e(f"s_mov_b32 s{m}, {init[0]:#x}"); e(f"s_mov_b32 s{m+1}, {init[1]:#x}")
    def poll_issue(loads, masks):
        for (d, t), m in zip(loads, masks):
            e(f"s_mov_b64 exec, s[{m}:{m+1}]")
            e(t)
        e("s_mov_b64 exec, -1")
    def poll_loop(name, loads, masks, thresh, sleeps, check_first=False):
        if check_first: e(f"s_branch L_{name}chk")
        e.label(f"L_{name}poll")
        poll_issue(loads, masks)
        if sleeps[0]:
            e(f"""s_cmp_lt_u32 s79, {thresh}
                  s_cbranch_scc1 L_{name}short
                  s_sleep {sleeps[0]}
                  L_{name}short:""")
        if sleeps[1]: e(f"s_sleep {sleeps[1]}")
        e.label(f"L_{name}chk")
        for (d, t), m in zip(loads, masks):
            e(f"""s_mov_b64 exec, s[{m}:{m+1}]
                  v_xor_b32 v6, s11, v{d+1}
                  v_bitop3_b32 v6, v6, v{d+3}, s11 bitop3:0xf6
                  v_cmp_ne_u32 s[{m}:{m+1}], 0, v6""")
        for k, m in enumerate(masks):
            if k == 0: e(f"s_bcnt1_i32_b64 s79, s[{m}:{m+1}]")
            else: e(f"""s_bcnt1_i32_b64 s83, s[{m}:{m+1}]
                        s_add_u32 s79, s79, s83""")
        e(f"""s_mov_b64 exec, -1
              s_cmp_eq_u32 s79, 0
              s_cbranch_scc1 L_{name}ok
              s_sub_u32 s82, s82, 1
              s_cbranch_scc0 L_{name}poll
              s_branch L_bail""")
        e.label(f"L_{name}ok")

    e(f"""s_cmp_ge_u32 s2, 256
          s_cbranch_scc1 L_end""")
    if stamps: e(f"v_mov_b32 {SV}, 0")
    stamp(0)
    e(f"""s_load_dwordx2 s[40:41], s[0:1], 8
          s_load_dwordx2 s[44:45], s[0:1], 16
          s_load_dwordx2 s[64:65], s[0:1], 0
          s_load_dwordx2 s[48:49], s[0:1], 88
          s_load_dwordx2 s[52:53], s[0:1], 24
          s_load_dwordx4 s[36:39], s[0:1], 48
          v_lshrrev_b32 v2, 6, v0
          v_and_b32 v1, 63, v0
          s_and_b32 s4, s2, 7
          v_readfirstlane_b32 s8, v2
          s_lshr_b32 s5, s2, 3
          s_lshr_b32 s6, s5, 2
          s_and_b32 s7, s5, 3
          s_load_dwordx2 s[56:57], s[0:1], 32
          s_load_dwordx2 s[60:61], s[0:1], 64
          s_load_dwordx2 s[68:69], s[0:1], 72
          s_and_b32 s9, s8, 3
          s_lshl_b32 s20, s7, 5
          s_add_u32 s20, s20, s9
          s_lshl_b32 s20, s20, 12
          s_lshl_b32 s16, s6, 3
          s_add_u32 s16, s16, s4
          s_lshl_b32 s16, s16, 21
          s_add_u32 s20, s20, s16
          s_add_u32 s20, s20, {6144*256}
          s_mov_b32 s42, 0x8000000
          s_mov_b32 s43, 0x20000
          s_mov_b32 s46, 0x8000000
          s_mov_b32 s47, 0x20000
          s_mov_b32 s50, {WS_SIZE}
          s_mov_b32 s51, 0x20000
          s_mov_b32 s82, {spin_limit}
          s_cmp_ge_u32 s5, 24
          s_cselect_b32 s12, 3, 2
          s_cmp_eq_u32 s4, 7
          s_cselect_b32 s12, 0, s12
          s_cmp_lt_u32 s5, 16
          s_cselect_b32 s12, 1, s12
          s_lshl_b32 s76, s4, 2
          s_lshr_b32 s16, s5, 3
          s_add_u32 s76, s76, s16
          v_and_b32 v2, 15, v1
          v_lshrrev_b32 v3, 4, v1
          v_mov_b32 v7, 0
          v_lshlrev_b32 v16, 4, v1
          v_mov_b32 v19, 1
          s_mov_b32 s66, 8192
          s_mov_b32 s67, 0x20000
          s_mov_b32 s80, 0xff00ff00
          s_mov_b32 s81, 0xff00ff00
          s_cmp_lt_u32 s8, 4
          s_cbranch_scc1 L_awave
          ; ================= K waves
          s_setprio 2
          s_getreg_b32 s98, hwreg(HW_REG_XCC_ID, 0, 4)
          v_and_b32 v4, 7, v1
          v_lshlrev_b32 v4, 8, v4
          v_bfe_u32 v6, v1, 3, 1
          v_lshl_add_u32 v4, v6, 6, v4
          v_lshl_add_u32 v4, v3, 4, v4
          s_lshl_b32 s26, s6, 5
          s_lshl_b32 s27, s4, 2
          s_add_u32 s26, s26, s27
          s_add_u32 s26, s26, s9
          s_lshl_b32 s26, s26, 11
          s_add_u32 s26, s26, {WSQ}
          s_lshl_b32 s27, s4, 9
          s_add_u32 s27, s27, {WPL}
          s_lshl_b32 s72, s76, 12
          s_lshl_b32 s16, s9, 10
          s_add_u32 s72, s72, s16
          s_add_u32 s72, s72, {WSG}
          s_add_u32 s73, s72, {GUSZ}
          s_add_u32 s74, s72, {2*GUSZ}
          s_add_u32 s75, s72, {3*GUSZ}
          s_mov_b64 s[32:33], -1
          s_mov_b64 s[34:35], -1
          s_cmp_eq_u32 s4, 7
          s_cselect_b64 s[86:87], 0, -1
          s_cselect_b64 s[88:89], 0, -1
          s_cselect_b64 s[90:91], 0, -1
          s_cselect_b64 s[92:93], 0, -1
          s_cmp_lg_u32 s9, 0
          s_cselect_b32 s30, 0, -1
          s_mov_b32 s31, 0
          s_waitcnt lgkmcnt(0)
          s_add_u32 s48, s48, {WSOFF}
          s_addc_u32 s49, s49, 0
          s_barrier
          s_load_dword s77, s[48:49], {WS_EPOCH}
          s_cmp_eq_u32 s12, 0
          s_cbranch_scc1 L_kgo
          s_barrier
          L_kgo:""")
    qloads = [(8, "buffer_load_dwordx4 v[8:11], v16, s[48:51], s26 offen sc1"),
              (12, "buffer_load_dwordx4 v[12:15], v16, s[48:51], s26 offen offset:1024 sc1")]
    guloads = [(240 + 4*k, f"buffer_load_dwordx4 {vr(240+4*k,4)}, v16, s[48:51], s{72+k} offen sc1") for k in range(4)]
    gumasks = [86, 88, 90, 92]
    plload = [(56, "buffer_load_dwordx4 v[56:59], v16, s[48:51], s27 offen sc1")]
    for j in range(NS):
        e(f"s_add_u32 s21, s20, {j*16384}")
        for q, off in enumerate((0, 128, 2048, 2176)):
            e(f"buffer_load_dwordx4 {vr(TS(j)+4*q,4)}, v4, s[40:43], s21 offen offset:{off} nt")
        if j == 1:
            e(f"""s_waitcnt lgkmcnt(0)
                  s_add_u32 s11, s77, 1
                  s_lshl_b32 s16, s5, 4
                  s_add_u32 s16, s16, s27
                  v_mov_b32 v20, s98
                  v_mov_b32 v21, s11
                  v_mov_b32 v22, s98
                  v_mov_b32 v23, s11
                  s_and_b32 exec_lo, s30, 1
                  s_mov_b32 exec_hi, 0
                  buffer_store_dwordx4 v[20:23], v7, s[48:51], s16 offen
                  s_mov_b64 exec, -1""")
            for d in (8, 12, 56, 240, 244, 248, 252): e(f"v_not_b32 v{d+1}, s11")
    poll_issue(qloads + plload + guloads, [32, 34, 30] + gumasks)
    stamp(4)
    e(f"""; QS write addr v17, read addr v18
          s_lshl_b32 s16, s9, 8
          v_lshrrev_b32 v17, 3, v1
          v_lshl_add_u32 v17, v17, 5, s16
          v_and_b32 v18, 3, v1
          v_lshl_add_u32 v17, v18, 3, v17
          v_bfe_u32 v18, v1, 2, 1
          v_lshl_add_u32 v17, v18, 2, v17
          v_and_b32 v18, 3, v2
          v_lshlrev_b32 v18, 8, v18
          v_lshrrev_b32 v20, 3, v2
          v_lshl_add_u32 v18, v20, 6, v18
          v_lshl_add_u32 v18, v3, 4, v18
          v_mov_b32 v50, 0xff800000
          s_mov_b32 s28, 0x3db504f3
          s_mov_b32 s29, 0x3db504f3
          v_lshlrev_b32 v21, 2, v1
          v_and_b32 v22, 3, v1
          v_lshlrev_b32 v22, 2, v22
          s_lshl_b32 s16, s9, 12
          s_add_u32 s16, s16, {L_P}
          v_add_u32 v23, s16, v16
          s_lshl_b32 s16, s9, 2
          v_mov_b32 v24, s16
          v_mov_b32 v51, 0
          s_cmp_eq_u32 s4, 7
          s_cbranch_scc1 L_w0
          s_waitcnt vmcnt(4)
          s_branch L_w1
          L_w0:
          s_waitcnt vmcnt(0)
          L_w1:
          s_cmp_lg_u32 s9, 0
          s_cbranch_scc1 L_nopl
          s_mov_b32 exec_hi, 0
          v_xor_b32 v6, s11, v57
          v_bitop3_b32 v6, v6, v59, s11 bitop3:0xf6
          v_bitop3_b32 v6, v6, v56, s98 bitop3:0xf6
          v_cmp_ne_u32 vcc, 0, v6
          s_mov_b64 exec, 1
          s_cmp_eq_u64 vcc, 0
          s_cselect_b32 s99, 1, 2
          v_mov_b32 v20, s99
          ds_write_b32 v7, v20 offset:{C_X}
          s_mov_b64 exec, -1
          L_nopl:""")
    poll_loop("q", qloads, [32, 34], 0, (0, QSLEEP), check_first=True)
    stamp(5)
    e(f"""v_add_f32 v20, v8, v12
          v_add_f32 v25, v10, v14
          v_cvt_pk_bf16_f32 v20, v20, v25
          ds_write_b32 v17, v20 offset:{L_QS}""")
    cnt_inc(C_Q)
    lds_spin("v7", C_Q, 4, f"ds_read_b128 v[40:43], v18 offset:{L_QS}\nds_read_b128 v[44:47], v18 offset:{L_QS+128}", sleep=0)
    DQ = lambda t: 192 + 16 * (t & 1)
    def qk_mfma(t):
        d = DQ(t)
        for u in range(2):
            k = TS(2 * t + u); dd = d + 8 * u
            e(f"""v_mfma_f32_16x16x32_bf16 {vr(dd,4)}, {vr(k,4)}, v[40:43], 0
                  v_mfma_f32_16x16x32_bf16 {vr(dd+4,4)}, {vr(k+8,4)}, v[40:43], 0""")
        for u in range(2):
            k = TS(2 * t + u); dd = d + 8 * u
            e(f"""v_mfma_f32_16x16x32_bf16 {vr(dd,4)}, {vr(k+4,4)}, v[44:47], {vr(dd,4)}
                  v_mfma_f32_16x16x32_bf16 {vr(dd+4,4)}, {vr(k+12,4)}, v[44:47], {vr(dd+4,4)}""")
    SP = lambda t: 224 + 4 * t
    def qk_post(t):
        s = SP(t); d = DQ(t)
        for u in range(2):
            for r in range(4): e(f"v_permlane32_swap_b32 v{d+8*u+r}, v{d+8*u+4+r}")
        for r in range(4): e(f"v_add_f32_dpp v{s+r}, v{d+4+r}, v{d+r} row_ror:8 row_mask:0xf bank_mask:0x3")
        for r in range(4): e(f"v_add_f32_dpp v{s+r}, v{d+8+r}, v{d+12+r} row_ror:8 row_mask:0xf bank_mask:0xc")
        e(f"""v_cvt_pk_bf16_f32 v52, v{s}, v{s+1}
              v_cvt_pk_bf16_f32 v53, v{s+2}, v{s+3}
              v_lshlrev_b32 v{s}, 16, v52
              v_and_b32 v{s+1}, 0xffff0000, v52
              v_lshlrev_b32 v{s+2}, 16, v53
              v_and_b32 v{s+3}, 0xffff0000, v53
              v_pk_mul_f32 v[{s}:{s+1}], v[{s}:{s+1}], s[28:29]
              v_pk_mul_f32 v[{s+2}:{s+3}], v[{s+2}:{s+3}], s[28:29]
              v_cvt_pk_bf16_f32 v52, v{s}, v{s+1}
              v_cvt_pk_bf16_f32 v53, v{s+2}, v{s+3}
              v_lshlrev_b32 v{s}, 16, v52
              v_and_b32 v{s+1}, 0xffff0000, v52
              v_lshlrev_b32 v{s+2}, 16, v53
              v_and_b32 v{s+3}, 0xffff0000, v53
              v_max3_f32 v50, v50, v{s}, v{s+1}
              v_max3_f32 v50, v50, v{s+2}, v{s+3}""")
    qk_mfma(0)
    for t in range(4):
        if t < 3: qk_mfma(t + 1)
        qk_post(t)
    e(f"""v_max_f32_dpp v50, v50, v50 row_ror:8 row_mask:0xf bank_mask:0xf
          v_mov_b32 v52, v50
          v_permlane32_swap_b32 v50, v52
          v_max_f32 v50, v50, v52
          v_mov_b32 v52, v50
          v_permlane16_swap_b32 v50, v52
          v_max_f32 v50, v50, v52
          s_mov_b64 exec, 15
          ds_max_f32 v21, v50 offset:{L_MACC}
          s_mov_b64 exec, 1
          ds_add_u32 v7, v19 offset:{C_M}
          s_mov_b64 exec, -1
          s_mov_b32 s28, 0x3fb8aa3b""")
    stamp(6)
    lds_spin("v7", C_M, 4, f"ds_read_b32 v50, v22 offset:{L_MACC}", sleep=0)
    e("v_mul_f32 v52, s28, v50")
    for t in range(4):
        for r in range(4): e(f"v_fma_f32 v{SP(t)+r}, v{SP(t)+r}, s28, -v52")
    for t in range(4):
        s = SP(t)
        for r in range(4): e(f"v_exp_f32 v{s+r}, v{s+r}")
        e(f"v_pk_add_f32 v[54:55], v[{s}:{s+1}], v[{s+2}:{s+3}]")
        for r in range(4): e(f"v_cvt_pk_bf16_f32 v{192+r}, v{s+r}, v{s+r}")
        e(f"""v_add_f32 v51, v51, v54
              ds_write_b128 v23, v[192:195] offset:{t*1024}
              v_add_f32 v51, v51, v55""")
    e(f"""s_mov_b64 exec, 1
          ds_write_b32 v24, v19 offset:{L_PF}
          s_mov_b64 exec, -1
          v_add_f32_dpp v51, v51, v51 row_ror:8 row_mask:0xf bank_mask:0xf
          v_mov_b32 v53, v51
          v_permlane32_swap_b32 v51, v53
          v_add_f32 v51, v51, v53
          v_mov_b32 v53, v51
          v_permlane16_swap_b32 v51, v53
          v_add_f32 v51, v51, v53
          s_mov_b64 exec, 15
          ds_add_f32 v21, v51 offset:{L_LACC}
          s_mov_b64 exec, 1
          ds_add_u32 v7, v19 offset:{C_L}
          s_mov_b64 exec, -1""")
    stamp(7)
    e(f"""s_cmp_lg_u32 s9, 0
          s_cbranch_scc1 L_noml""")
    lds_spin("v7", C_L, 4, f"ds_read_b32 v26, v22 offset:{L_LACC}", sleep=0)
    e(f"""v_mov_b32 v24, v50
          v_mov_b32 v25, s11
          v_mov_b32 v27, s11
          v_lshlrev_b32 v20, 9, v1
          s_lshl_b32 s16, s4, 7
          s_add_u32 s16, s16, s5
          s_lshl_b32 s16, s16, 4
          s_add_u32 s16, s16, {WML}
          s_mov_b64 exec, 15
          buffer_store_dwordx4 v[24:27], v20, s[48:51], s16 offen
          s_cmp_eq_u32 s99, 1
          s_cbranch_scc1 L_mlloc
          buffer_store_dwordx4 v[24:27], v20, s[48:51], s16 offen sc1
          L_mlloc:
          s_mov_b64 exec, -1
          L_noml:
          s_setprio 0
          s_mov_b32 s58, 4194304
          s_mov_b32 s59, 0x20000
          s_mov_b32 s62, 1835008
          s_mov_b32 s63, 0x20000
          v_lshrrev_b32 v36, 3, v1
          v_lshlrev_b32 v36, 10, v36
          v_and_b32 v37, 7, v1
          v_lshl_add_u32 v38, v37, 4, v36
          s_and_b32 s78, s5, 7
          s_lshl_b32 s78, s78, 7
          s_lshl_b32 s16, s76, 17
          s_lshl_b32 s17, s9, 15
          s_add_u32 s16, s16, s17
          s_add_u32 s16, s16, s78
          s_lshl_b32 s17, s9, 12
          s_add_u32 s17, s17, {L_WO}""")
    for q in range(4):
        e(f"""s_add_u32 m0, s17, {q*1024}
              v_xor_b32 v39, {32*q}, v38
              buffer_load_dwordx4 v39, s[56:59], s16 offen nt lds
              s_add_u32 s16, s16, 8192""")
    e(f"""v_lshlrev_b32 v38, 1, v3
          v_xor_b32 v38, v38, v37
          v_lshl_add_u32 v38, v38, 4, v36
          s_lshl_b32 s16, s76, 16
          s_lshl_b32 s17, s9, 14
          s_add_u32 s16, s16, s17
          s_add_u32 s16, s16, s78
          s_lshl_b32 s17, s9, 11
          s_add_u32 m0, s17, {L_WD}
          s_add_u32 s18, s16, 8192
          buffer_load_dwordx4 v38, s[60:63], s16 offen nt lds
          s_add_u32 m0, s17, {L_WD+1024}
          s_nop 0
          buffer_load_dwordx4 v38, s[60:63], s18 offen nt lds
          s_setprio 1""")
    stamp(8)
    poll_loop("gu", guloads, gumasks, 0, (0, QSLEEP), check_first=True)
    e(f"""s_mov_b32 s16, 0xbfb8aa3b
          v_add_f32 v32, v240, v244
          v_add_f32 v33, v242, v246
          v_add_f32 v34, v248, v252
          v_add_f32 v35, v250, v254
          v_cvt_pk_bf16_f32 v36, v32, v33
          v_cvt_pk_bf16_f32 v37, v34, v35
          v_lshlrev_b32 v32, 16, v36
          v_and_b32 v33, 0xffff0000, v36
          v_mul_f32 v32, s16, v32
          v_mul_f32 v33, s16, v33
          v_exp_f32 v32, v32
          v_exp_f32 v33, v33
          v_lshlrev_b32 v34, 16, v37
          v_and_b32 v35, 0xffff0000, v37
          v_add_f32 v32, 1.0, v32
          v_add_f32 v33, 1.0, v33
          v_rcp_f32 v32, v32
          v_rcp_f32 v33, v33
          v_lshrrev_b32 v20, 5, v1
          v_cvt_pk_bf16_f32 v36, v32, v33
          s_lshl_b32 s17, s9, 1
          v_add_u32 v20, s17, v20
          v_mul_u32_u24 v20, 144, v20
          v_lshlrev_b32 v32, 16, v36
          v_and_b32 v33, 0xffff0000, v36
          v_mul_f32 v32, v32, v34
          v_mul_f32 v33, v33, v35
          v_cvt_pk_bf16_f32 v22, v32, v33
          v_bfe_u32 v23, v1, 4, 1
          v_lshl_add_u32 v20, v23, 6, v20
          v_and_b32 v23, 3, v1
          v_lshl_add_u32 v20, v23, 4, v20
          v_bfe_u32 v23, v1, 3, 1
          v_lshl_add_u32 v20, v23, 3, v20
          v_bfe_u32 v23, v1, 2, 1
          v_lshl_add_u32 v20, v23, 2, v20
          ds_write_b32 v20, v22 offset:{L_HB}
          v_lshrrev_b32 v24, 2, v2
          v_lshl_add_u32 v24, v3, 2, v24
          v_lshlrev_b32 v25, 7, v24
          v_bfe_u32 v24, v24, 1, 2
          v_xor_b32 v24, s9, v24
          v_lshl_add_u32 v25, v24, 5, v25
          v_and_b32 v24, 3, v2
          v_lshl_add_u32 v25, v24, 3, v25
          v_and_b32 v27, 7, v2
          v_mul_u32_u24 v26, 144, v27
          v_lshl_add_u32 v26, v3, 4, v26
          s_mov_b32 s16, {SBROW}
          v_mul_lo_u32 v27, v27, s16
          v_lshl_add_u32 v27, v3, 4, v27
          v_lshrrev_b32 v24, 3, v2
          v_lshl_add_u32 v27, v24, 6, v27
          s_and_b32 s27, s5, 7
          s_lshl_b32 s27, s27, 2
          s_add_u32 s27, s27, s9
          s_mul_i32 s27, s27, {NSLOT}
          s_add_u32 s27, s27, s76
          s_add_u32 s27, s27, 32
          s_lshl_b32 s27, s27, 7
          s_add_u32 s27, s27, {WSB}
          v_mov_b32 v41, s11
          v_mov_b32 v43, s11
          s_mov_b32 s70, 8192
          s_mov_b32 s71, 0x20000
          s_lshl_b32 s17, s7, 3
          s_add_u32 s17, s17, s4
          s_lshl_b32 s16, s6, 5
          s_add_u32 s16, s16, s17
          s_lshl_b32 s18, s16, 5
          v_and_b32 v20, 3, v1
          v_lshlrev_b32 v20, 3, v20
          v_bfe_u32 v21, v1, 2, 1
          v_lshl_add_u32 v20, v21, 2, v20
          buffer_load_dword v22, v20, s[64:67], s18 offen
          s_mul_i32 s16, s16, {NSLOT*128}
          s_add_u32 s16, s16, {WSB}
          s_add_u32 s17, s16, 4096
          s_waitcnt vmcnt(0) lgkmcnt(0)""")
    cnt_inc(C_D)
    stamp(9)
    e("s_cmp_eq_u32 s4, 7\ns_cbranch_scc1 L_nod")
    lds_spin("v7", C_D, 4, sleep=0)
    e(f"""ds_read_b64_tr_b16 v[64:65], v25 offset:{L_WD}
          ds_read_b64_tr_b16 v[66:67], v25 offset:{L_WD+2048}
          ds_read_b128 v[72:75], v26 offset:{L_HB}
          ds_read_b64_tr_b16 v[68:69], v25 offset:{L_WD+4096}
          ds_read_b64_tr_b16 v[70:71], v25 offset:{L_WD+6144}
          ds_read_b128 v[76:79], v26 offset:{L_HB+64}
          s_waitcnt lgkmcnt(3)
          v_mfma_f32_16x16x32_bf16 v[32:35], v[64:67], v[72:75], 0
          s_waitcnt lgkmcnt(0)
          v_mfma_f32_16x16x32_bf16 v[32:35], v[68:71], v[76:79], v[32:35]
          v_cndmask_b32 v40, v32, v34, s[80:81]
          v_cndmask_b32 v42, v33, v35, s[80:81]""")
    if DLATE: lds_spin("v7", C_O, 4)
    e(f"""buffer_store_dwordx4 v[40:43], v27, s[48:51], s27 offen sc1
          L_nod:
          s_cmp_lg_u32 s9, 0
          s_cbranch_scc1 L_done""")
    stamp(10)
    floads = [(64 + 4*j, f"buffer_load_dwordx4 {vr(64+4*j,4)}, v16, s[48:51], s{(16,17)[j//4]} offen offset:{(j%4)*1024} sc1") for j in range(8)]
    fmasks = [20, 22, 24, 26, 28, 30, 32, 34]
    poll_init(floads, fmasks)
    e("s_mov_b32 s35, 0\nv_mov_b32 v92, 0\nv_mov_b32 v94, 0\ns_mov_b32 s79, 512")
    lds_spin("v7", C_O, 4)
    if FDELAY: e(f"s_sleep {FDELAY}")
    stamp(13)
    poll_loop("f", floads, fmasks, 129, FSLEEP)
    stamp(11)
    for base in (64, 80):
        o = 96 + (base - 64) // 4
        e(f"""v_add_f32 v{o}, v{base}, v{base+4}
              v_add_f32 v{o+2}, v{base+2}, v{base+6}
              v_add_f32 v{o+1}, v{base+8}, v{base+12}
              v_add_f32 v{o+3}, v{base+10}, v{base+14}
              v_add_f32 v{o}, v{o}, v{o+1}
              v_add_f32 v{o+2}, v{o+2}, v{o+3}""")
    R = (96, 98, 100, 102)
    for r in R: e(f"v_add_f32_dpp v{r}, v{r}, v{r} row_ror:8 row_mask:0xf bank_mask:0xf")
    for r in R: e(f"v_mov_b32 v{r+1}, v{r}")
    for r in R: e(f"v_permlane16_swap_b32 v{r}, v{r+1}")
    for r in R: e(f"v_add_f32 v{r}, v{r}, v{r+1}")
    for r in R: e(f"v_mov_b32 v{r+1}, v{r}")
    for r in R: e(f"v_permlane32_swap_b32 v{r}, v{r+1}")
    for r in R: e(f"v_add_f32 v{r}, v{r}, v{r+1}")
    e(f"""v_cvt_pk_bf16_f32 v32, v96, v98
          v_cvt_pk_bf16_f32 v33, v100, v102
          s_mov_b32 s16, 0xbfb8aa3b
          v_lshlrev_b32 v34, 16, v33
          v_and_b32 v35, 0xffff0000, v33
          v_mul_f32 v36, s16, v34
          v_mul_f32 v37, s16, v35
          v_exp_f32 v36, v36
          v_exp_f32 v37, v37
          v_add_f32 v36, 1.0, v36
          v_add_f32 v37, 1.0, v37
          v_rcp_f32 v36, v36
          v_rcp_f32 v37, v37
          v_mul_f32 v34, v34, v36
          v_mul_f32 v35, v35, v37
          v_cvt_pk_bf16_f32 v33, v34, v35
          v_lshlrev_b32 v34, 16, v33
          v_and_b32 v35, 0xffff0000, v33
          v_lshlrev_b32 v36, 16, v32
          v_and_b32 v37, 0xffff0000, v32
          v_mul_f32 v34, v34, v36
          v_mul_f32 v35, v35, v37
          v_cvt_pk_bf16_f32 v33, v34, v35
          v_lshlrev_b32 v34, 16, v33
          v_and_b32 v35, 0xffff0000, v33
          v_lshlrev_b32 v36, 16, v22
          v_and_b32 v37, 0xffff0000, v22
          v_add_f32 v34, v34, v36
          v_add_f32 v35, v35, v37
          v_cvt_pk_bf16_f32 v33, v34, v35
          s_mov_b64 exec, 0xff
          buffer_store_dword v33, v20, s[68:71], s18 offen
          s_cmp_lg_u32 s2, 0
          s_cbranch_scc1 L_done
          s_mov_b64 exec, 1
          v_mov_b32 v33, s11
          buffer_store_dword v33, v7, s[48:51], 0 offen sc1
          s_branch L_done""")

    e.label("L_awave")
    e(f"""s_setprio 3
          v_lshlrev_b32 v5, 10, v3
          v_lshl_add_u32 v5, v2, 4, v5
          v_mov_b32 v60, 0
          s_mov_b32 s96, {WS_SIZE}
          s_cmp_lg_u32 s8, 0
          s_cbranch_scc1 L_noinit
          v_mov_b32 v8, 0
          v_mov_b32 v9, 0
          v_mov_b32 v10, 0
          v_mov_b32 v11, 0
          v_mov_b32 v12, 0xff800000
          v_mov_b32 v13, 0xff800000
          v_mov_b32 v14, 0xff800000
          v_mov_b32 v15, 0xff800000
          ds_write_b128 v7, v[8:11] offset:0
          ds_write_b128 v7, v[12:15] offset:{L_MACC}
          ds_write_b128 v7, v[8:11] offset:{L_LACC}
          ds_write_b128 v7, v[8:11] offset:{L_PF}
          ds_write_b128 v7, v[8:11] offset:64
          L_noinit:
          s_lshl_b32 s13, s4, 3
          s_lshr_b32 s17, s5, 1
          s_add_u32 s13, s13, s17
          s_lshl_b32 s18, s4, 2
          s_and_b32 s17, s17, 3
          s_add_u32 s18, s18, s17
          s_and_b32 s15, s5, 1
          s_mov_b32 s14, 8192
          s_mov_b32 s54, 4194304
          s_mov_b32 s55, 0x20000
          s_cmp_ge_u32 s12, 2
          s_cselect_b32 s13, s18, s13
          s_cselect_b32 s14, 3584, s14
          s_cselect_b32 s54, 1835008, s54
          v_lshlrev_b32 v8, 5, v1
          v_lshrrev_b32 v9, 3, v1
          v_mul_lo_u32 v9, v9, s14
          v_lshlrev_b32 v10, 1, v3
          v_and_b32 v11, 7, v1
          v_xor_b32 v10, v10, v11
          v_lshl_add_u32 v9, v10, 4, v9
          s_lshl_b32 s16, s9, 11
          s_lshl_b32 s17, s15, 2
          s_add_u32 s17, s17, s9
          s_lshl_b32 s18, s14, 6
          s_mul_i32 s17, s17, s18
          s_lshl_b32 s18, s13, 7
          s_add_u32 s17, s17, s18
          s_lshl_b32 s18, s14, 3
          s_lshl_b32 s19, s9, 13
          s_add_u32 s19, s19, {L_U}
          s_add_u32 s25, s19, 8192
          s_waitcnt lgkmcnt(0)
          s_add_u32 s48, s48, {WSOFF}
          s_addc_u32 s49, s49, 0
          s_barrier
          s_load_dword s77, s[48:49], {WS_EPOCH}
          s_cmp_eq_u32 s12, 0
          s_cbranch_scc1 L_vphase
          buffer_load_dwordx4 v[64:67], v8, s[64:67], s16 offen
          buffer_load_dwordx4 v[68:71], v8, s[64:67], s16 offen offset:16
          s_cmp_eq_u32 s12, 2
          s_cselect_b64 s[52:53], s[36:37], s[52:53]
          s_cmp_eq_u32 s12, 3
          s_cselect_b64 s[52:53], s[38:39], s[52:53]
          L_udma:
          s_mov_b32 m0, s19
          s_add_u32 s19, s19, 1024
          buffer_load_dwordx4 v9, s[52:55], s17 offen nt lds
          s_add_u32 s17, s17, s18
          s_cmp_lt_u32 s19, s25
          s_cbranch_scc1 L_udma
          s_barrier
          v_lshrrev_b32 v17, 5, v1
          s_lshl_b32 s16, s9, 1
          v_add_u32 v17, s16, v17
          v_mul_u32_u24 v17, 1040, v17
          v_bfe_u32 v11, v1, 1, 4
          v_lshl_add_u32 v17, v11, 6, v17
          v_and_b32 v11, 1, v1
          v_lshl_add_u32 v17, v11, 3, v17
          v_lshrrev_b32 v11, 2, v2
          v_lshl_add_u32 v11, v3, 2, v11
          v_lshlrev_b32 v18, 7, v11
          v_bfe_u32 v11, v11, 1, 2
          v_xor_b32 v11, s9, v11
          v_lshl_add_u32 v18, v11, 5, v18
          v_and_b32 v11, 3, v2
          v_lshl_add_u32 v18, v11, 3, v18
          v_add_u32 v18, {L_U}, v18
          v_and_b32 v14, 7, v2
          v_mul_u32_u24 v20, 1040, v14
          v_lshl_add_u32 v20, v3, 4, v20
          s_lshl_b32 s16, s15, 9
          v_add_u32 v20, s16, v20
          v_lshrrev_b32 v15, 3, v2
          s_andn2_b32 s16, s13, 1
          s_add_u32 s16, s16, s15
          s_lshl_b32 s16, s16, 1
          s_and_b32 s17, s13, 1
          s_add_u32 s16, s16, s17
          s_lshl_b32 s16, s16, 9
          s_add_u32 s16, s16, {WSQ}
          s_sub_u32 s17, s12, 2
          s_lshl_b32 s17, s17, 1
          s_add_u32 s17, s17, s15
          s_mul_i32 s17, s17, 28
          s_add_u32 s17, s17, s13
          s_lshl_b32 s17, s17, 12
          s_add_u32 s17, s17, {WSG}
          s_cmp_eq_u32 s12, 1
          s_cselect_b32 s96, s16, s17
          s_cselect_b32 s17, 16, 9
          s_lshl_b32 s16, s9, 7
          s_add_u32 s96, s96, s16
          v_lshlrev_b32 v60, s17, v14
          v_lshl_add_u32 v60, v15, 6, v60
          v_lshl_add_u32 v60, v3, 4, v60
          s_waitcnt vmcnt(8)""")
    stamp(1)
    for k in range(8):
        e(f"v_lshlrev_b32 v{80+2*k}, 16, v{64+k}")
        e(f"v_and_b32 v{81+2*k}, 0xffff0000, v{64+k}")
    def reduce32(t, tmp):
        e(f"""v_add_f32_dpp {t}, {t}, {t} quad_perm:[1,0,3,2] row_mask:0xf bank_mask:0xf
              v_add_f32_dpp {t}, {t}, {t} quad_perm:[2,3,0,1] row_mask:0xf bank_mask:0xf
              v_add_f32_dpp {t}, {t}, {t} row_half_mirror row_mask:0xf bank_mask:0xf
              v_add_f32_dpp {t}, {t}, {t} row_mirror row_mask:0xf bank_mask:0xf
              v_mov_b32 {tmp}, {t}
              v_permlane16_swap_b32 {t}, {tmp}
              v_add_f32 {t}, {t}, {tmp}""")
    for k in range(4):
        e(f"v_pk_add_f32 v[{96+2*k}:{97+2*k}], v[{80+4*k}:{81+4*k}], v[{82+4*k}:{83+4*k}]")
    e("""v_pk_add_f32 v[96:97], v[96:97], v[98:99]
         v_pk_add_f32 v[100:101], v[100:101], v[102:103]
         v_pk_add_f32 v[96:97], v[96:97], v[100:101]
         v_add_f32 v10, v96, v97""")
    reduce32("v10", "v11")
    e("v_mul_f32 v10, 0x3b000000, v10")
    e("v_mov_b32 v12, 0")
    e("v_mov_b32 v13, 0")
    for k in range(16): e(f"v_sub_f32 v{96+k}, v{80+k}, v10")
    for k in range(16): e(f"v_fmac_f32 v{12+(k&1)}, v{96+k}, v{96+k}")
    e("v_add_f32 v12, v12, v13")
    reduce32("v12", "v11")
    e("""v_mul_f32 v12, 0x3b000000, v12
         v_cvt_pk_bf16_f32 v10, v10, v12
         v_and_b32 v12, 0xffff0000, v10
         v_lshlrev_b32 v10, 16, v10
         v_add_f32 v12, 0x3727c5ac, v12
         v_cvt_pk_bf16_f32 v12, v12, v12
         v_and_b32 v12, 0xffff0000, v12
         v_sqrt_f32 v12, v12
         v_cvt_pk_bf16_f32 v12, v12, v12
         v_and_b32 v12, 0xffff0000, v12
         v_rcp_f32 v13, v12""")
    for k in range(16): e(f"v_sub_f32 v{80+k}, v{80+k}, v10")
    for k in range(8): e(f"v_cvt_pk_bf16_f32 v{96+k}, v{80+2*k}, v{81+2*k}")
    for k in range(8):
        e(f"v_lshlrev_b32 v{80+2*k}, 16, v{96+k}")
        e(f"v_and_b32 v{81+2*k}, 0xffff0000, v{96+k}")
    for k in range(16): e(f"v_mul_f32 v{96+k}, v{80+k}, v13")
    for k in range(16): e(f"v_fma_f32 v{80+k}, -v{96+k}, v12, v{80+k}")
    for k in range(16): e(f"v_fmac_f32 v{96+k}, v{80+k}, v13")
    for k in range(8): e(f"v_cvt_pk_bf16_f32 v{64+k}, v{96+2*k}, v{97+2*k}")
    e(f"""ds_write_b64 v17, v[64:65] offset:{L_XN}
          ds_write_b64 v17, v[66:67] offset:{L_XN+16}
          ds_write_b64 v17, v[68:69] offset:{L_XN+32}
          ds_write_b64 v17, v[70:71] offset:{L_XN+48}
          s_waitcnt vmcnt(0) lgkmcnt(0)""")
    cnt_inc(C_U)
    e("""s_add_u32 s11, s77, 1
         v_mov_b32 v57, s11
         v_mov_b32 v59, s11""")
    stamp(2)
    lds_spin("v7", C_U, 4, sleep=0)
    for s in range(8):
        r = 64 + 8 * s
        e(f"ds_read_b64_tr_b16 v[{r}:{r+1}], v18 offset:{s*4096}")
        e(f"ds_read_b64_tr_b16 v[{r+2}:{r+3}], v18 offset:{s*4096+2048}")
        e(f"ds_read_b128 v[{r+4}:{r+7}], v20 offset:{L_XN + s*64}")
        if s >= 4:
            q = s - 4; rr = 64 + 8 * q; d = 32 + 4 * (q & 1)
            e("s_waitcnt lgkmcnt(12)")
            e(f"v_mfma_f32_16x16x32_bf16 {vr(d,4)}, {vr(rr,4)}, {vr(rr+4,4)}, {'0' if q < 2 else vr(d,4)}")
    for q in range(4, 8):
        rr = 64 + 8 * q; d = 32 + 4 * (q & 1)
        e(f"s_waitcnt lgkmcnt({3*(7-q)})")
        e(f"v_mfma_f32_16x16x32_bf16 {vr(d,4)}, {vr(rr,4)}, {vr(rr+4,4)}, {vr(d,4)}")
    e(f"""v_pk_add_f32 v[32:33], v[32:33], v[36:37]
          v_pk_add_f32 v[34:35], v[34:35], v[38:39]
          v_cndmask_b32 v56, v32, v34, s[80:81]
          v_cndmask_b32 v58, v33, v35, s[80:81]
          buffer_store_dwordx4 v[56:59], v60, s[48:51], s96 offen""")
    stamp(3)
    e.label("L_vphase")
    e(f"""v_lshrrev_b32 v20, 2, v2
          v_and_b32 v21, 1, v20
          v_lshlrev_b32 v21, 4, v21
          v_mov_b32 v22, 0xffff
          v_lshlrev_b32 v21, v21, v22
          v_cmp_gt_u32 vcc, 2, v20
          v_cndmask_b32 v48, 0, v21, vcc
          v_cndmask_b32 v49, v21, 0, vcc
          s_setprio 0""")
    for j in range(NS):
        e(f"s_add_u32 s21, s20, {j*16384}")
        for q in range(4):
            e(f"buffer_load_dwordx4 {vr(TS(j)+4*q,4)}, v5, s[44:47], s21 offen offset:{q*256} nt")
        if j == 0:
            e(f"""v_mov_b32 v32, 0
                  v_mov_b32 v33, 0
                  v_mov_b32 v34, 0
                  v_mov_b32 v35, 0
                  v_mov_b32 v36, 0
                  v_mov_b32 v37, 0
                  v_mov_b32 v38, 0
                  v_mov_b32 v39, 0
                  s_lshl_b32 s16, s9, 12
                  s_add_u32 s16, s16, {L_P}
                  v_and_b32 v20, 3, v2
                  v_lshl_add_u32 v20, v3, 4, v20
                  v_lshl_add_u32 v20, v20, 4, s16
                  s_lshl_b32 s16, s9, 2
                  v_mov_b32 v21, s16
                  v_add_u32 v22, v1, v3
                  v_lshlrev_b32 v22, 4, v22
                  s_mul_i32 s16, s9, 2304
                  s_add_u32 s16, s16, {L_PO}
                  v_add_u32 v22, s16, v22
                  v_lshrrev_b32 v23, 5, v1
                  v_mul_u32_u24 v23, 1152, v23
                  v_bfe_u32 v24, v1, 3, 2
                  v_mul_u32_u24 v24, 272, v24
                  v_add_u32 v23, v23, v24
                  v_bfe_u32 v24, v1, 1, 2
                  v_lshl_add_u32 v23, v24, 6, v23
                  v_and_b32 v24, 1, v1
                  v_lshl_add_u32 v23, v24, 3, v23
                  s_lshl_b32 s16, s9, 4
                  s_add_u32 s16, s16, {L_PO}
                  v_add_u32 v23, s16, v23
                  s_lshl_b32 s30, s4, 5
                  s_add_u32 s30, s30, s5
                  s_lshl_b32 s30, s30, 12
                  s_lshl_b32 s17, s9, 10
                  s_add_u32 s30, s30, s17
                  s_add_u32 s30, s30, {WOP}""")
        if j == 1:
            e(f"""; ML gather v17/s31 ; hop A soffsets s22..s29 ; OB write v24, read v25 ; wo tr v26 ; SB store v28/s74
                  v_and_b32 v17, 7, v1
                  v_lshlrev_b32 v17, 4, v17
                  s_lshl_b32 s31, s76, 9
                  s_lshl_b32 s18, s9, 7
                  s_add_u32 s31, s31, s18
                  s_add_u32 s31, s31, {WML}
                  s_lshl_b32 s22, s4, 17
                  s_lshl_b32 s18, s9, 15
                  s_add_u32 s22, s22, s18
                  s_lshr_b32 s18, s5, 3
                  s_lshl_b32 s18, s18, 10
                  s_add_u32 s22, s22, s18
                  s_add_u32 s22, s22, {WOP}
                  s_add_u32 s23, s22, 4096
                  s_add_u32 s24, s22, 8192
                  s_add_u32 s25, s22, 12288
                  s_add_u32 s26, s22, 16384
                  s_add_u32 s27, s22, 20480
                  s_add_u32 s28, s22, 24576
                  s_add_u32 s29, s22, 28672
                  s_mul_i32 s18, s9, 544
                  v_lshl_add_u32 v24, v1, 2, s18
                  v_and_b32 v28, 7, v2
                  v_mul_u32_u24 v25, 272, v28
                  v_lshl_add_u32 v25, v3, 4, v25
                  v_lshrrev_b32 v26, 1, v3
                  v_lshlrev_b32 v26, 5, v26
                  v_lshrrev_b32 v27, 2, v2
                  v_lshl_add_u32 v26, v27, 3, v26
                  v_and_b32 v29, 1, v3
                  v_lshl_add_u32 v26, v29, 1, v26
                  v_lshlrev_b32 v26, 7, v26
                  v_xor_b32 v27, s9, v27
                  v_lshl_add_u32 v26, v27, 5, v26
                  v_and_b32 v29, 3, v2
                  v_lshl_add_u32 v26, v29, 3, v26
                  s_mov_b32 s17, {SBROW}
                  v_mul_lo_u32 v28, v28, s17
                  v_lshl_add_u32 v28, v3, 4, v28
                  v_lshrrev_b32 v27, 3, v2
                  v_lshl_add_u32 v28, v27, 6, v28
                  s_and_b32 s17, s5, 7
                  s_lshl_b32 s17, s17, 2
                  s_add_u32 s17, s17, s9
                  s_mul_i32 s17, s17, {NSLOT}
                  s_add_u32 s17, s17, s76
                  s_lshl_b32 s17, s17, 7
                  s_add_u32 s74, s17, {WSB}
                  s_waitcnt lgkmcnt(0)
                  s_add_u32 s11, s77, 1
                  v_mov_b32 v9, s11
                  v_mov_b32 v11, s11
                  v_mov_b32 v13, s11
                  v_mov_b32 v15, s11
                  v_not_b32 v53, s11""")
    mlload = [(52, "buffer_load_dwordx4 v[52:55], v17, s[48:51], s31 offen sc1")]
    e("s_mov_b32 s72, 0xff\ns_mov_b32 s73, 0")
    poll_issue(mlload, [72])
    e("s_setprio 3")
    stamp(4)
    e(f"""L_mode:
          ds_read_b32 v6, v7 offset:{C_X}
          s_waitcnt lgkmcnt(0)
          v_readfirstlane_b32 s99, v6
          s_cmp_eq_u32 s99, 1
          s_cbranch_scc1 L_modeok
          s_cmp_eq_u32 s99, 2
          s_cbranch_scc1 L_repub
          s_sub_u32 s82, s82, 1
          s_cbranch_scc1 L_bail
          s_sleep 1
          s_branch L_mode
          L_repub:
          s_cmp_eq_u32 s12, 0
          s_cbranch_scc1 L_modeok
          buffer_store_dwordx4 v[56:59], v60, s[48:51], s96 offen sc1
          s_waitcnt vmcnt(0)
          L_modeok:""")
    stamp(5)
    lds_spin("v21", L_PF, 1, "\n".join(f"ds_read_b128 {vr(PR(j),4)}, v20 offset:{(j>>1)*1024 + (j&1)*128}" for j in range(NS)))
    stamp(6)
    for j in range(NS):
        v = TS(j); s = PR(j); k = 40
        for r in range(4):
            e(f"v_and_b32 v{k+2*r}, v{s+r}, v48")
            e(f"v_and_b32 v{k+2*r+1}, v{s+r}, v49")
        e(f"s_waitcnt vmcnt({4*(NS-1-j)+1})")
        e(f"""v_swap_b32 v{v+2}, v{v+4}
              v_swap_b32 v{v+3}, v{v+5}
              v_mfma_f32_16x16x32_bf16 v[32:35], {vr(v,4)}, {vr(k,4)}, v[32:35]
              v_swap_b32 v{v+10}, v{v+12}
              v_swap_b32 v{v+11}, v{v+13}
              v_mfma_f32_16x16x32_bf16 v[36:39], {vr(v+4,4)}, {vr(k,4)}, v[36:39]
              v_mfma_f32_16x16x32_bf16 v[32:35], {vr(v+8,4)}, {vr(k+4,4)}, v[32:35]
              v_mfma_f32_16x16x32_bf16 v[36:39], {vr(v+12,4)}, {vr(k+4,4)}, v[36:39]""")
    stamp(8)
    e(f"""ds_write_b128 v22, v[32:35]
          ds_write_b128 v22, v[36:39] offset:1152""")
    cnt_inc(C_P)
    lds_spin("v7", C_P, 4, "\n".join(f"ds_read_b64 v[{40+2*w}:{41+2*w}], v23 offset:{w*2304}" for w in range(4)), sleep=0)
    e(f"""v_pk_add_f32 v[40:41], v[40:41], v[42:43]
          v_pk_add_f32 v[44:45], v[44:45], v[46:47]
          v_add_f32 v8, v40, v44
          v_add_f32 v10, v41, v45
          buffer_store_dwordx4 v[8:11], v16, s[48:51], s30 offen
          s_cmp_eq_u32 s99, 1
          s_cbranch_scc1 L_oploc
          buffer_store_dwordx4 v[8:11], v16, s[48:51], s30 offen sc1
          L_oploc:""")
    stamp(9)
    aloads = [(64 + 4*k, f"buffer_load_dwordx4 {vr(64+4*k,4)}, v16, s[48:51], s{22+k} offen sc1") for k in range(8)]
    amasks = [12, 14, 16, 18, 32, 34, 36, 38]
    poll_init(aloads, amasks)
    poll_issue(aloads, amasks)
    poll_loop("ml", mlload, [72], 0, (0, 2), check_first=True)
    e("""s_mov_b32 s75, 0x3fb8aa3b
         v_max_f32_dpp v36, v52, v52 quad_perm:[1,0,3,2] row_mask:0xf bank_mask:0xf
         v_max_f32_dpp v36, v36, v36 quad_perm:[2,3,0,1] row_mask:0xf bank_mask:0xf
         v_sub_f32 v36, v52, v36
         v_mul_f32 v36, s75, v36
         v_exp_f32 v36, v36
         v_mul_f32 v37, v36, v54
         v_add_f32_dpp v37, v37, v37 quad_perm:[1,0,3,2] row_mask:0xf bank_mask:0xf
         v_add_f32_dpp v37, v37, v37 quad_perm:[2,3,0,1] row_mask:0xf bank_mask:0xf
         v_rcp_f32 v37, v37
         v_mul_f32 v36, v36, v37""")
    for k in range(8): e(f"v_readlane_b32 s{86+k}, v36, {k}")
    stamp(7)
    poll_loop("a", aloads, amasks, 129, ASLEEP, check_first=True)
    stamp(10)
    for bb in range(2):
        b0 = 64 + 16 * bb
        e(f"""v_mul_f32 v{38+2*bb}, s{86+4*bb}, v{b0}
              v_mul_f32 v{39+2*bb}, s{86+4*bb}, v{b0+2}""")
    for s_ in range(1, 4):
        for bb in range(2):
            b0 = 64 + 16 * bb
            e(f"""v_fmac_f32 v{38+2*bb}, s{86+4*bb+s_}, v{b0+4*s_}
                  v_fmac_f32 v{39+2*bb}, s{86+4*bb+s_}, v{b0+4*s_+2}""")
    for bb in range(2):
        e(f"v_cvt_pk_bf16_f32 v{36+bb}, v{38+2*bb}, v{39+2*bb}")
    e(f"""ds_write_b32 v24, v36 offset:{L_OB}
          ds_write_b32 v24, v37 offset:{L_OB+272}""")
    cnt_inc(C_O)
    trs = []
    for s in range(4):
        off = L_WO + (64 * (s & 1) + 4 * (s >> 1)) * 128
        trs.append(f"ds_read_b64_tr_b16 v[{96+4*s}:{97+4*s}], v26 offset:{off}")
        trs.append(f"ds_read_b64_tr_b16 v[{98+4*s}:{99+4*s}], v26 offset:{off+128}")
    lds_spin("v7", C_D, 4, "\n".join(trs), sleep=0)
    lds_spin("v7", C_O, 4, "\n".join(f"ds_read_b128 {vr(112+4*s,4)}, v25 offset:{L_OB+64*s}" for s in range(4)), sleep=0)
    e(f"""v_mfma_f32_16x16x32_bf16 v[36:39], v[96:99], v[112:115], 0
          v_mfma_f32_16x16x32_bf16 v[40:43], v[100:103], v[116:119], 0
          v_mfma_f32_16x16x32_bf16 v[36:39], v[104:107], v[120:123], v[36:39]
          v_mfma_f32_16x16x32_bf16 v[40:43], v[108:111], v[124:127], v[40:43]
          v_pk_add_f32 v[36:37], v[36:37], v[40:41]
          v_pk_add_f32 v[38:39], v[38:39], v[42:43]
          v_cndmask_b32 v12, v36, v38, s[80:81]
          v_cndmask_b32 v14, v37, v39, s[80:81]
          buffer_store_dwordx4 v[12:15], v28, s[48:51], s74 offen sc1
          s_branch L_done""")
    e.label("L_bail")
    e(f"""s_load_dwordx2 s[16:17], s[0:1], 80
          s_mov_b64 exec, 1
          v_mov_b32 v8, 1
          v_mov_b32 v9, 0
          s_waitcnt lgkmcnt(0)
          global_atomic_add v9, v8, s[16:17]""")
    e.label("L_done")
    if stamps:
        stamp(12)
        e(f"""s_mov_b64 exec, 0xffff
              s_lshl_b32 s16, s2, 3
              s_add_u32 s16, s16, s8
              s_lshl_b32 s16, s16, 6
              s_add_u32 s16, s16, {WSTAMP}
              v_lshlrev_b32 v7, 2, v1
              buffer_store_dword {SV}, v7, s[48:51], s16 offen""")
    e.label("L_end")
    e("s_endpgm")
    e.raw('.section .rodata,"a"'); e.raw(".p2align 6"); e.raw(f".amdhsa_kernel {KNAME}")
    e.raw("  .amdhsa_next_free_vgpr 256"); e.raw("  .amdhsa_next_free_sgpr 102"); e.raw("  .amdhsa_accum_offset 256")
    e.raw("  .amdhsa_group_segment_fixed_size 0"); e.raw("  .amdhsa_kernarg_size 96"); e.raw("  .amdhsa_user_sgpr_count 2")
    e.raw("  .amdhsa_user_sgpr_kernarg_segment_ptr 1"); e.raw("  .amdhsa_system_sgpr_workgroup_id_x 1")
    e.raw("  .amdhsa_float_denorm_mode_32 3")
    e.raw(".end_amdhsa_kernel")
    return e.text()

if __name__ == "__main__":
    open("k8.s", "w").write(gen(spin_limit=200000))
    V = {"k8_st": {}, "k8_dl": dict(DLATE=True), "k8_end": dict(WSOFF=504 << 20), "k8_as2": dict(ASLEEP=(2, 0)), "k8_fd8": dict(FDELAY=8), "k8_fs": dict(FSLEEP=(2, 0))}
    for n, kw in V.items(): open(n + ".s", "w").write(gen(stamps=True, spin_limit=200000, **kw))
    print("LDS", LDS_TOTAL)
```
